```python
import torch

def _softmax(x, axis=-1):
    return torch.softmax(x, dim=axis)
def _gelu(x):
    return torch.nn.functional.gelu(x, approximate="tanh")
def _silu(x):
    return torch.nn.functional.silu(x)
def _sigmoid(x):
    return torch.sigmoid(x)
def _layernorm(x, axis=-1, eps=1e-5):
    m = x.mean(dim=axis, keepdim=True)
    v = x.var(dim=axis, keepdim=True, unbiased=False)
    return (x - m) / torch.sqrt(v + eps)
def _scatter_add(tgt, idx, src, axis=0):
    return tgt.clone().index_add_(axis, idx, src)
def _segment_sum(src, seg, n):
    out = torch.zeros((n,) + src.shape[1:], dtype=src.dtype)
    return out.index_add_(0, seg, src)
def _pad(x, pw):
    flat = tuple(v for pair in reversed(pw) for v in pair)
    return torch.nn.functional.pad(x, flat)

kernel_name = 'sequential_preLN__spectral_gfnet__mixer_channel_mlp__prompt'

def setup_inputs():

    _w = (lambda a: (lambda t: t.to(torch.bfloat16) if t.is_floating_point() else t)(torch.as_tensor(a)))
    def _A_setup():
        B, S, D = 1, 2048, 640
        Df = D // 2 + 1
        return {
            "x": _w((lambda *s: torch.randn(*s, dtype=torch.bfloat16) * 0.05)(B, S, D)),
            "w_r": _w((lambda *s: torch.randn(*s, dtype=torch.bfloat16) * 0.8)(S, Df) * 0.02),
            "w_i": _w((lambda *s: torch.randn(*s, dtype=torch.bfloat16) * 0.8)(S, Df) * 0.02),
        }
    _A_in = _A_setup()

    def _B_setup():
        B, S, D, F = 1, 2048, 640, 1536
        return {
            "x": _w((lambda *s: torch.randn(*s, dtype=torch.bfloat16) * 0.05)(B, S, D)),
            "w1": _w((lambda *s: torch.randn(*s, dtype=torch.bfloat16) * 0.8)(D, F) * (D ** -0.5)),
            "b1": _w((lambda *s: torch.randn(*s, dtype=torch.bfloat16) * 0.4)(F)),
            "w2": _w((lambda *s: torch.randn(*s, dtype=torch.bfloat16) * 0.05)(F, D) * (F ** -0.5)),
            "b2": _w((lambda *s: torch.randn(*s, dtype=torch.bfloat16) * 0.05)(D)),
        }
    _B_in = _B_setup()

    return {
        "A_x": _A_in["x"],
        "A_w_r": _A_in["w_r"],
        "A_w_i": _A_in["w_i"],
        "B_x": _B_in["x"],
        "B_w1": _B_in["w1"],
        "B_b1": _B_in["b1"],
        "B_w2": _B_in["w2"],
        "B_b2": _B_in["b2"],
    }

def reference(A_x, A_w_r, A_w_i, B_x, B_w1, B_b1, B_w2, B_b2):
    def _A_ref(x, w_r, w_i):
        B, S, D = x.shape
        X = (lambda x, axes=(-2,-1): torch.fft.rfft2(x.float(), dim=axes))(x, axes=(-2, -1))
        W = w_r + 1j * w_i
        X = X * W
        y = (lambda x, s, axes=(-2,-1): torch.fft.irfft2(x, s=s, dim=axes).to(torch.bfloat16))(X, (S, D), axes=(-2, -1))
        return y

    def _B_ref(x, w1, b1, w2, b2):
        y = _layernorm(x, axis=-1)
        h = _gelu(torch.einsum("bsd,df->bsf", y, w1) + b1)
        return torch.einsum("bsf,fd->bsd", h, w2) + b2

    x = A_x
    h = x + _A_ref(_layernorm(x, axis=-1), A_w_r, A_w_i)
    h2 = h + _B_ref(_layernorm(h, axis=-1), B_w1, B_b1, B_w2, B_b2)
    return h2
```

```python
import re, struct

def f2h(x):
    return "0x%08x" % struct.unpack("<I", struct.pack("<f", x))[0]

TRANS = ("v_exp_f32", "v_log_f32", "v_rcp_f32", "v_rsq_f32", "v_sqrt_f32", "v_sin_f32", "v_cos_f32")
_reg = re.compile(r"^-?\|?([vas])(\d+)\|?$")
_rng = re.compile(r"^-?([vas])\[(\d+):(\d+)\]$")

def regs_of(op):
    op = op.strip()
    m = _reg.match(op)
    if m: return [(m.group(1), int(m.group(2)))]
    m = _rng.match(op)
    if m: return [(m.group(1), n) for n in range(int(m.group(2)), int(m.group(3)) + 1)]
    if op == "vcc": return [("s", "vcc")]
    if op == "exec": return [("s", "exec")]
    if op == "m0": return [("s", "m0")]
    return []

class Ins:
    __slots__ = ("text", "op", "kind", "w", "r", "srcc", "passes", "slots", "wide", "dpp", "lds")

def parse(text):
    t = text.split(";")[0].strip()
    op, _, rest = t.partition(" ")
    parts = [p.strip() for p in rest.split(",")] if rest else []
    mods = ""
    if parts:
        ops = []
        done = False
        for p in parts:
            if done: mods += "," + p; continue
            if " " in p:
                a, b = p.split(" ", 1)
                ops.append(a); mods = b; done = True
            else: ops.append(p)
        parts = ops
    I = Ins(); I.text = text; I.op = op; I.w = []; I.r = []; I.srcc = []; I.passes = 0; I.slots = 1
    I.wide = False; I.dpp = False; I.lds = False
    R = [regs_of(p) for p in parts]
    if op.startswith("v_mfma"):
        I.kind = "mfma"; I.w = R[0]; I.r = R[1] + R[2] + R[3]; I.srcc = R[3]
        I.passes = 8 if "32x32" in op else 4
    elif op.startswith("v_"):
        I.kind = "valu"
        I.w = list(R[0]); I.r = [x for rr in R[1:] for x in rr]
        if op.startswith(("v_fmac", "v_dot2c", "v_pk_fmac")) or "permlane" in op: I.r += R[0]
        if "permlane" in op and "swap" in op: I.w += R[1]
        if op.startswith(("v_add_co", "v_addc_co", "v_sub_co")): I.w += R[1]
        if op.startswith("v_cndmask") and len(parts) == 3: I.r.append(("s", "vcc"))
        if "_dpp" in op or "quad_perm" in mods or "row_" in mods:
            I.dpp = True
            I.r += R[0]
    elif op.startswith("ds_"):
        I.kind = "ds"
        if op.startswith(("ds_read", "ds_bpermute", "ds_permute", "ds_swizzle")):
            I.w = R[0]; I.r = [x for rr in R[1:] for x in rr]
        else: I.r = [x for rr in R for x in rr]
    elif op.startswith(("buffer_", "global_")):
        I.kind = "vmem"
        toks = mods.split()
        if "lds" in toks:
            I.lds = True; I.r = [x for rr in R for x in rr] + [("s", "m0")]
        elif "load" in op:
            I.w = R[0]; I.r = [x for rr in R[1:] for x in rr]
        else:
            I.r = [x for rr in R for x in rr]
            I.wide = "x4" in op or "x3" in op
            I.srcc = R[0] if R else []
    elif op == "s_nop":
        I.kind = "nop"; I.slots = int(parts[0]) + 1
    elif op.startswith("s_load") or op.startswith("s_memtime") or op.startswith("s_memrealtime"):
        I.kind = "smem"; I.w = R[0]; I.r = [x for rr in R[1:] for x in rr]
    elif op.startswith("s_"):
        I.kind = "salu"
        if op.startswith(("s_cmp", "s_cbranch", "s_branch", "s_waitcnt", "s_barrier", "s_endpgm", "s_sleep", "s_setprio")):
            I.r = [x for rr in R for x in rr]
        else:
            I.w = list(R[0]) if R else []; I.r = [x for rr in R[1:] for x in rr]
            if "saveexec" in op: I.w.append(("s", "exec"))
    else:
        raise ValueError("unknown instruction: " + text)
    return I

def need(p, c):
    n = 0
    pw = set(p.w)
    cr = set(c.r); cw = set(c.w)
    vec = lambda s: {x for x in s if x[0] in "va"}
    sc = lambda s: {x for x in s if x[0] == "s"}
    if p.kind == "valu":
        ov = vec(pw) & cr
        if ov:
            if c.kind == "mfma": n = max(n, 2)
            if c.kind == "valu":
                if c.dpp or "permlane" in c.op: n = max(n, 2)
                if c.op.startswith(("v_readfirstlane", "v_readlane")): n = max(n, 1)
                if p.op.startswith(TRANS) and not c.op.startswith(TRANS): n = max(n, 1)
        if p.op.startswith("v_dot2") and (vec(pw) & (cr | cw)) and c.kind in ("valu", "mfma", "ds", "vmem"):
            same = c.op == p.op
            if not same: n = max(n, 3)
            else:
                ab = set(c.r[:2]) if True else set()
                if vec(pw) & ab: n = max(n, 3)
        so = sc(pw) & cr
        if so:
            if c.kind == "vmem": n = max(n, 5)
            elif c.kind == "valu": n = max(n, 4 if c.op.startswith(("v_readlane", "v_writelane")) else 2)
            else: n = max(n, 2)
        if ("s", "vcc") in pw and c.op.startswith("s_cbranch_vcc"): n = max(n, 2)
    if p.kind == "mfma":
        big = p.passes == 8
        if c.kind == "mfma":
            if pw & set(c.srcc):
                if not (set(c.srcc) == pw and c.passes == p.passes): n = max(n, 10 if big else 6)
            ab = set(c.r) - set(c.srcc) if not (set(c.srcc) & (set(c.r[:len(c.r) - len(c.srcc)]))) else set(c.r)
            ab = set(c.r[:len(c.r) - len(c.srcc)])
            if pw & ab: n = max(n, 12 if big else 8)
            if pw & cw and not (pw & set(c.srcc)): n = max(n, 12 if big else 8)
        elif c.kind in ("valu", "ds", "vmem"):
            if pw & (cr | cw): n = max(n, 12 if big else 8)
        if c.kind == "valu" and set(p.srcc) & cw: n = max(n, 7 if big else 3)
        if c.kind in ("ds", "vmem") and set(p.srcc) & cw: n = max(n, 7 if big else 3)
    if p.kind == "vmem" and p.wide and set(p.srcc) & cw:
        n = max(n, 2)
    if p.kind == "salu" and ("s", "m0") in pw and c.kind == "vmem" and c.lds: n = max(n, 1)
    return n

class Emit:
    def __init__(self):
        self.out = []
        self.hist = []
        self.vm = []
        self.lg = []
        self.sm = set()
        self.opt = []
        self.nops = 0
        self.count = {}
    def raw(self, text): self.out.append(text)
    def comment(self, t): self.out.append("    ; " + t)
    def _push(self, I):
        self.out.append("    " + I.text)
        self.hist.append(I)
        if len(self.hist) > 24: self.hist.pop(0)
        self.count[I.kind] = self.count.get(I.kind, 0) + 1
    def _waitcnt(self, vm=None, lg=None):
        s = "s_waitcnt"
        if vm is not None:
            vm = min(vm, 63); s += " vmcnt(%d)" % vm
            self._retire(self.vm, vm)
        if lg is not None:
            lg = min(lg, 15); s += " lgkmcnt(%d)" % lg
            self._retire(self.lg, lg)
            if lg == 0: self.sm = set()
        self._push(parse(s))
    @staticmethod
    def _retire(q, n):
        k = 0; cut = 0
        for idx in range(len(q) - 1, -1, -1):
            if k >= n: cut = idx + 1; break
            if not q[idx][1]: k += 1
        else: cut = 0
        if n == 0: cut = len(q)
        del q[:cut]
    @staticmethod
    def _cnt(q, touched):
        last = -1
        for idx, (d, o) in enumerate(q):
            if d & touched: last = idx
        if last < 0: return None
        return sum(1 for (d, o) in q[last + 1:] if not o)
    def wait(self, vm=None, lg=None): self._waitcnt(vm, lg)
    def wait_vm_tag(self, tag):
        n = self._cnt(self.vm, {tag})
        if n is not None: self._waitcnt(vm=n)
    def wait_lg_tag(self, tag):
        n = self._cnt(self.lg, {tag})
        if n is not None: self._waitcnt(lg=n)
    def __call__(self, text, tag=None):
        for line in text.split("\n"):
            line = line.strip()
            if line: self.ins(line, tag)
    def ins(self, text, tag=None):
        I = parse(text)
        touched = set(I.r) | set(I.w)
        nv = self._cnt(self.vm, touched); nl = self._cnt(self.lg, touched)
        if self.sm & touched: nl = 0
        if self.sm and nl is not None: nl = 0
        if nv is not None or nl is not None: self._waitcnt(nv, nl)
        dist = 0; pad = 0
        for p in reversed(self.hist):
            n = need(p, I)
            if n > dist: pad = max(pad, n - dist)
            dist += p.slots
            if dist > 16: break
        while pad > 0:
            k = min(pad, 16); self._push(parse("s_nop %d" % (k - 1))); pad -= k; self.nops += k
        self._push(I)
        o = bool(self.opt)
        if I.kind == "vmem":
            d = set(I.w)
            if tag: d.add(tag)
            self.vm.append([d, o])
        elif I.kind == "ds":
            d = set(I.w)
            if tag: d.add(tag)
            self.lg.append([d, o])
        elif I.kind == "smem": self.sm |= set(I.w)
    def settle(self):
        dist = 0; pad = 0
        for p in reversed(self.hist):
            n = {"valu": 5, "mfma": 12 if p.passes == 8 else 8, "vmem": 2 if p.wide else 0, "salu": 1}.get(p.kind, 0)
            if p.kind == "valu" and not any(x[0] == "s" for x in p.w): n = 3 if p.op.startswith("v_dot2") else 2
            if p.kind == "salu" and ("s", "m0") not in p.w: n = 0
            if n > dist: pad = max(pad, n - dist)
            dist += p.slots
            if dist > 16: break
        if pad: self._push(parse("s_nop %d" % (pad - 1))); self.nops += pad
    def label(self, name):
        self.settle(); self.out.append(name + ":")
    def branch(self, text):
        I = parse(text)
        self.settle(); self.ins(text)
    def begin_opt(self):
        self.opt.append(([[set(d), o] for d, o in self.vm], [[set(d), o] for d, o in self.lg], set(self.sm), len(self.vm), len(self.lg)))
        self._mark = None
    def end_opt(self):
        vm, lg, sm, _, _ = self.opt.pop()
        newv = [e for e in self.vm if e[1]]; newl = [e for e in self.lg if e[1]]
        oldv = [e for e in vm if e[1]]
        self.vm = vm + [e for e in newv if e not in vm]
        self.lg = lg + [e for e in newl if e not in lg]
        self.sm = sm | self.sm
    def barrier(self, lg=True):
        if lg and self.lg: self._waitcnt(lg=0)
        self.ins("s_barrier")
    def text(self): return "\n".join(self.out) + "\n"
```

```python
import sys, math
from asm import Emit, f2h

KNAME = "sequential_preLN__spectral_gfnet__mixer_channel_mlp__prompt_kernel"
WS_E = 0
WS_F1 = 0x10000; WS_F2 = 0x20000; WS_F3 = 0x30000
FS = 128
WS_T = 0x100000
WS_WT = 0x600000
WS_V = 0xA00000
WS_W1T = 0xE00000
WS_W2T = 0x1000000
WS_H = 0x1200000
WS_DBG = 0x2000000
OOB = 0x40000000
L_XS1 = 0; XP1 = 1344
L_STAT = 43008
L_TST = 43520; TP = 176
L_AUX1 = 55296; L_AUX2 = 64512; AP = 288
L_XS3 = 0; XP3 = 1296; XS3W = 21504
L_G = 86016; GP = 224
L_EXCH = 114688
L_VST = 131072; VSTW = 2816
L_VIN = 0
L_Y2 = 0
L_RHO = 86016
L_HS = 142336; HP = 336
L_PART = 0
LDS_BYTES = 163840
EPS = 1e-5

X, WR, WI, W1, B1, W2, B2, OUT, WS = [f"s[{n}:{n+3}]" for n in (4, 8, 12, 16, 20, 24, 28, 32, 60)]
sID = "s2"; sW = "s64"; sTAG = "s65"; sXCD = "s66"; sLOC = "s67"
sB = "s68"; sMUP = "s69"; sGAM = "s70"; sMU = "s71"; sRB = "s72"; sJS = "s73"
sT = ["s%d" % n for n in range(74, 96)]

def vr(a, n=4): return f"v[{a}:{a+n-1}]" if n > 1 else f"v{a}"
def ar(a, n=4): return f"a[{a}:{a+n-1}]" if n > 1 else f"a{a}"
MF = "v_mfma_f32_16x16x32_bf16"

class Gen:
    def __init__(self, stop=99, stamps=False, spin=200000):
        self.e = Emit(); self.stop = stop; self.stamps = stamps; self.spin = spin; self.nst = 0; self.uid = 0
    def stamp(self):
        if not self.stamps: return
        e = self.e
        n = self.nst; self.nst += 1
        e("s_memtime s[96:97]"); e.wait(lg=0)
        e(f"v_writelane_b32 v15, s96, {n}")
    def sdiv(self, dst, src, d, maxv):
        for sh in range(8, 24):
            m = -(-(1 << sh) // d)
            if all((x * m) >> sh == x // d for x in range(maxv + 1)): break
        else: raise ValueError
        self.e(f"s_mul_i32 {dst}, {src}, {m}\ns_lshr_b32 {dst}, {dst}, {sh}")
    def vdiv(self, dst, src, d, maxv):
        for sh in range(8, 24):
            m = -(-(1 << sh) // d)
            if all((x * m) >> sh == x // d for x in range(maxv + 1)): break
        else: raise ValueError
        assert m < (1 << 24) and maxv * m < (1 << 32)
        self.e(f"v_mul_u32_u24 {dst}, {m}, {src}\nv_lshrrev_b32 {dst}, {sh}, {dst}")
    def si_of(self, dst, gam, mu, t0, scalar):
        e = self.e
        e(f"v_lshrrev_b32 {dst}, 2, {gam}\nv_lshlrev_b32 {dst}, 6, {dst}")
        e(f"v_lshrrev_b32 {t0}, 1, {mu}\nv_lshl_add_u32 {dst}, {t0}, 3, {dst}")
        e(f"v_and_b32 {t0}, 3, {gam}\nv_lshl_add_u32 {dst}, {t0}, 1, {dst}")
        e(f"v_and_b32 {t0}, 1, {mu}\nv_add_u32 {dst}, {dst}, {t0}")
    def poll(self, vaddr, vtmp, soff="0"):
        e = self.e; self.uid += 1; u = self.uid
        e(f"s_mov_b32 {sT[20]}, 0")
        e.label(f"L_poll{u}")
        e(f"buffer_load_dword {vtmp}, {vaddr}, {WS}, {soff} offen sc1")
        e.wait(vm=0)
        e(f"v_cmp_ne_u32 vcc, {sTAG}, {vtmp}")
        e.branch(f"s_cbranch_vccz L_got{u}")
        e(f"s_add_u32 {sT[20]}, {sT[20]}, 1\ns_cmp_gt_u32 {sT[20]}, {self.spin}")
        e.branch(f"s_cbranch_scc1 L_got{u}")
        e("s_sleep 2")
        e.branch(f"s_branch L_poll{u}")
        e.label(f"L_got{u}")
    def set_flag(self, base, sidx):
        e = self.e; self.uid += 1; u = self.uid
        e(f"s_cmp_lg_u32 {sW}, 0")
        e.branch(f"s_cbranch_scc1 L_nf{u}")
        e.begin_opt()
        e(f"s_mul_i32 {sT[20]}, {sidx}, {FS}\ns_add_u32 {sT[20]}, {sT[20]}, {base}")
        e(f"v_mov_b32 v4, {sTAG}\nv_mov_b32 v5, {sT[20]}")
        e("s_mov_b64 exec, 1")
        e(f"buffer_store_dword v4, v5, {WS}, 0 offen sc1")
        e("s_mov_b64 exec, -1")
        e.end_opt()
        e.label(f"L_nf{u}")
    def finish(self):
        e = self.e
        if self.stamps:
            e(f"s_lshl_b32 {sT[0]}, {sID}, 2\ns_add_u32 {sT[0]}, {sT[0]}, {sW}\ns_lshl_b32 {sT[0]}, {sT[0]}, 8\ns_add_u32 {sT[0]}, {sT[0]}, {WS_DBG}")
            e(f"v_lshlrev_b32 v14, 2, v1\nbuffer_store_dword v15, v14, {WS}, {sT[0]} offen")
        e.label("L_end")
        e("s_endpgm")

    def prologue(self):
        e = self.e
        e(f"s_cmp_ge_u32 {sID}, 256")
        e.branch("s_cbranch_scc1 L_end")
        e("s_load_dwordx16 s[36:51], s[0:1], 0\ns_load_dwordx2 s[52:53], s[0:1], 64\ns_load_dwordx2 s[56:57], s[0:1], 80")
        if self.stamps: e("v_mov_b32 v15, 0")
        e("v_and_b32 v1, 63, v0\nv_and_b32 v2, 15, v0\nv_bfe_u32 v3, v0, 4, 2\nv_lshrrev_b32 v4, 6, v0")
        e(f"v_readfirstlane_b32 {sW}, v4")
        e(f"s_and_b32 {sXCD}, {sID}, 7\ns_lshr_b32 {sLOC}, {sID}, 3")
        e(f"s_lshr_b32 {sB}, {sLOC}, 2\ns_lshl_b32 {sT[0]}, {sXCD}, 3\ns_add_u32 {sB}, {sB}, {sT[0]}\ns_and_b32 {sMUP}, {sLOC}, 3")
        e(f"s_lshr_b32 {sRB}, {sLOC}, 3\ns_lshl_b32 {sT[0]}, {sXCD}, 2\ns_add_u32 {sRB}, {sRB}, {sT[0]}\ns_and_b32 {sJS}, {sLOC}, 7")
        e(f"s_lshr_b32 {sGAM}, {sID}, 6\ns_lshl_b32 {sGAM}, {sGAM}, 2\ns_bfe_u32 {sT[0]}, {sID}, 0x20001\ns_or_b32 {sGAM}, {sGAM}, {sT[0]}")
        e(f"s_bfe_u32 {sMU}, {sID}, 0x30003\ns_lshl_b32 {sMU}, {sMU}, 1\ns_and_b32 {sT[0]}, {sID}, 1\ns_or_b32 {sMU}, {sMU}, {sT[0]}")
        e(f"v_lshrrev_b32 v4, 3, v0\nv_lshlrev_b32 v4, 6, v4\nv_add_u32 v4, {sB}, v4\nv_mul_u32_u24 v4, 1280, v4\nv_and_b32 v5, 7, v0\nv_lshl_add_u32 v4, v5, 4, v4")
        for (n, p, size) in ((4, 36, 2621440), (8, 38, 1314816), (12, 40, 1314816), (16, 44, 1966080), (20, 46, 3072),
                             (24, 48, 1966080), (28, 50, 1280), (32, 52, 2621440), (60, 56, 0x10000000)):
            e(f"s_mov_b32 s{n}, s{p}\ns_and_b32 s{n+1}, s{p+1}, 0xffff\ns_mov_b32 s{n+2}, {size}\ns_mov_b32 s{n+3}, 0x20000")
            if n == 4:
                for i in range(10): e(f"buffer_load_dwordx4 {vr(16+4*i)}, v4, {X}, 0 offen offset:{128*i}")
        e(f"s_load_dword {sTAG}, s[56:57], {WS_E}")
        self.stamp()

    def aux_loads(self):
        e = self.e
        q, fb, k2, nb, js, st, inv = sT[0], sT[1], sT[2], sT[3], sT[4], sT[5], sT[6]
        self.sdiv(q, sID, 12, 255); e(f"s_mul_i32 {fb}, {q}, 12\ns_sub_u32 {fb}, {sID}, {fb}")
        self.sdiv(k2, sID, 5, 255); e(f"s_mul_i32 {nb}, {k2}, 5\ns_sub_u32 {nb}, {sID}, {nb}")
        self.sdiv(js, k2, 6, 63); e(f"s_mul_i32 {st}, {js}, 6\ns_sub_u32 {st}, {k2}, {st}")
        e(f"s_cmp_lt_u32 {sID}, 240\ns_cselect_b32 {inv}, 0, {OOB}")
        e("v_lshrrev_b32 v5, 4, v0\nv_and_b32 v6, 15, v0")
        e(f"s_mul_i32 {sT[7]}, {q}, 3072\ns_lshl_b32 {sT[8]}, {fb}, 8\ns_add_u32 {sT[7]}, {sT[7]}, {sT[8]}\ns_add_u32 {sT[7]}, {sT[7]}, {inv}")
        e(f"v_mul_u32_u24 v7, {20*3072}, v5\nv_lshl_add_u32 v7, v6, 4, v7\nv_add_u32 v7, {sT[7]}, v7")
        e(f"s_mov_b32 {sT[8]}, {16*20*3072}")
        e(f"buffer_load_dwordx4 {vr(56)}, v7, {W1}, 0 offen\nbuffer_load_dwordx4 {vr(60)}, v7, {W1}, {sT[8]} offen")
        e(f"v_lshrrev_b32 v8, 3, v5\nv_mul_u32_u24 v8, 48, v8\nv_bfe_u32 v9, v5, 2, 1\nv_lshl_add_u32 v8, v9, 3, v8\nv_and_b32 v9, 3, v5\nv_add_u32 v8, v8, v9")
        e(f"s_cmp_lt_u32 {st}, 4\ns_cselect_b64 vcc, -1, 0")
        e(f"v_cndmask_b32 v8, v8, v5, vcc")
        e(f"s_mul_i32 {sT[7]}, {st}, 48\ns_mul_i32 {sT[8]}, {st}, 96\ns_sub_u32 {sT[8]}, {sT[8]}, {4*96-32}")
        e(f"s_cmp_lt_u32 {st}, 4\ns_cselect_b32 {sT[7]}, {sT[7]}, {sT[8]}\ns_cselect_b32 {sT[8]}, 16, 4\ns_mul_i32 {sT[8]}, {sT[8]}, 1280")
        e(f"s_mul_i32 {sT[9]}, {js}, 192\ns_add_u32 {sT[7]}, {sT[7]}, {sT[9]}\ns_mul_i32 {sT[7]}, {sT[7]}, 1280")
        e(f"s_lshl_b32 {sT[9]}, {nb}, 8\ns_add_u32 {sT[7]}, {sT[7]}, {sT[9]}\ns_add_u32 {sT[7]}, {sT[7]}, {inv}")
        e(f"v_mul_u32_u24 v8, 1280, v8\nv_lshl_add_u32 v8, v6, 4, v8\nv_add_u32 v8, {sT[7]}, v8")
        e(f"buffer_load_dwordx4 {vr(64)}, v8, {W2}, 0 offen\nbuffer_load_dwordx4 {vr(68)}, v8, {W2}, {sT[8]} offen")
        for i in range(2):
            ft, a, b_, c = sT[7], sT[8], sT[9], sT[14]
            e(f"s_lshl_b32 {ft}, {fb}, 3\ns_lshl_b32 {a}, {sW}, 1\ns_add_u32 {ft}, {ft}, {a}\ns_add_u32 {ft}, {ft}, {i}")
            self.sdiv(a, ft, 3, 127); e(f"s_mul_i32 {b_}, {a}, 3\ns_sub_u32 {b_}, {ft}, {b_}")
            e(f"s_mul_i32 {a}, {a}, 60\ns_add_u32 {a}, {a}, {b_}\ns_mul_i32 {b_}, {q}, 3\ns_add_u32 {a}, {a}, {b_}")
            e(f"s_lshl_b32 {a}, {a}, 10\ns_add_u32 {a}, {a}, {WS_W1T}\ns_add_u32 {sT[10+i]}, {a}, {inv}")
            e(f"s_lshl_b32 {ft}, {nb}, 3\ns_lshl_b32 {a}, {sW}, 1\ns_add_u32 {ft}, {ft}, {a}\ns_add_u32 {ft}, {ft}, {i}")
            self.sdiv(a, ft, 5, 63); e(f"s_mul_i32 {b_}, {a}, 5\ns_sub_u32 {b_}, {ft}, {b_}")
            e(f"s_mul_i32 {a}, {a}, 48\ns_add_u32 {a}, {a}, {k2}\ns_mul_i32 {a}, {a}, 5\ns_add_u32 {a}, {a}, {b_}")
            e(f"s_lshl_b32 {a}, {a}, 10\ns_add_u32 {a}, {a}, {WS_W2T}\ns_add_u32 {sT[12+i]}, {a}, {inv}")
        c2, part = sRB, sJS
        gam, cd, isg0, isneg = sT[0], sT[1], sT[2], sT[3]
        e(f"s_sub_u32 {gam}, 32, {c2}\ns_cmp_gt_u32 {c2}, 16\ns_cselect_b32 {gam}, {gam}, {c2}\ns_cselect_b32 {isneg}, 1, 0\ns_and_b32 {gam}, {gam}, 15")
        e(f"s_cmp_eq_u32 {gam}, 0\ns_cselect_b32 {cd}, {c2}, {gam}\ns_cselect_b32 {isg0}, 1, 0")
        e(f"v_lshlrev_b32 v5, 7, v2\nv_add_u32 v5, {cd}, v5")
        for grp in range(3):
            kk, m, n, sg, mu, dst, t = "v6", "v7", "v8", "v9", "v10", f"v{108+grp}", "v11"
            e(f"s_mul_i32 {sT[4]}, {part}, 40\ns_lshl_b32 {sT[5]}, {sW}, 2\ns_add_u32 {sT[4]}, {sT[4]}, {sT[5]}\ns_add_u32 {sT[4]}, {sT[4]}, {16*grp}")
            e(f"v_add_u32 {kk}, {sT[4]}, v3")
            e(f"v_and_b32 {m}, 31, {kk}")
            e(f"v_cmp_lt_u32 vcc, 16, {m}\ns_cmp_eq_u32 {isg0}, 1\ns_cselect_b64 s[96:97], vcc, 0\ns_cmp_eq_u32 {isneg}, 1\ns_cselect_b64 s[96:97], -1, s[96:97]")
            e(f"v_sub_u32 {t}, 640, {kk}\nv_cndmask_b32 {n}, {kk}, {t}, s[96:97]")
            e(f"v_cndmask_b32 {sg}, 1, -1, s[96:97]")
            e(f"v_mov_b32 {t}, 0x80000000\nv_cndmask_b32 v{112+grp}, 0, {t}, s[96:97]")
            e(f"v_and_b32 {m}, 31, {n}\nv_lshrrev_b32 {n}, 5, {n}")
            e(f"v_sub_u32 {t}, 32, {m}\nv_min_u32 {mu}, {t}, {m}\nv_and_b32 {mu}, 15, {mu}")
            e(f"v_mov_b32 v12, {gam}")
            self.si_of(dst, "v12", mu, t, False)
            e(f"v_mul_u32_u24 {dst}, 11264, {dst}")
            e(f"v_lshrrev_b32 {t}, 4, {m}\ns_lshr_b32 {sT[5]}, {c2}, 4\nv_mov_b32 v12, {sT[5]}")
            e(f"s_cmp_eq_u32 {isg0}, 1\ns_cselect_b64 vcc, -1, 0\nv_cndmask_b32 v12, {t}, v12, vcc")
            e(f"v_mul_u32_u24 v12, 5632, v12\nv_add_u32 {dst}, {dst}, v12")
            e(f"v_cmp_le_u32 vcc, 10, {n}\nv_cndmask_b32 v12, 0, 1, vcc\nv_add_u32 v12, v12, {n}\nv_lshlrev_b32 v12, 8, v12")
            e(f"v_mul_u32_u24 {t}, 2816, {t}\nv_lshl_add_u32 {t}, {n}, 8, {t}")
            e(f"v_cmp_eq_u32 vcc, 0, {mu}\ns_cmp_eq_u32 {isg0}, 1\ns_cselect_b64 vcc, vcc, 0\nv_cndmask_b32 v12, v12, {t}, vcc")
            e(f"v_add_u32 {dst}, {dst}, v12\nv_lshl_add_u32 {dst}, v2, 4, {dst}\nv_add_u32 {dst}, {WS_WT}, {dst}")
            e(f"v_mov_b32 {t}, {OOB}\nv_cmp_eq_u32 vcc, 0, {kk}\nv_cndmask_b32 {dst}, {dst}, {t}, vcc")
            if grp == 2:
                e(f"s_cmp_ge_u32 {sW}, 2\ns_cselect_b64 s[98:99], -1, 0\nv_cndmask_b32 {dst}, {dst}, {t}, s[98:99]")
                e(f"s_and_b32 {sT[5]}, {sW}, 1\ns_mul_i32 {sT[5]}, {sT[5]}, 320\nv_mov_b32 v12, {sT[5]}\nv_cndmask_b32 {kk}, {kk}, v12, s[98:99]")
            e(f"v_lshlrev_b32 {kk}, 1, {kk}")
            for i in range(4):
                e(f"v_add_u32 {t}, {32*i}, v5\nv_mul_i32_i24 {t}, {t}, {sg}")
                if grp == 2 and i < 2:
                    e(f"v_lshlrev_b32 v12, 5, v1\nv_add_u32 v12, {c2}, v12")
                    if i == 1: e("v_sub_u32 v12, 0, v12")
                    e(f"v_cndmask_b32 {t}, {t}, v12, s[98:99]")
                e(f"v_and_b32 {t}, 2047, {t}\nv_mul_u32_u24 {t}, 642, {t}\nv_add_u32 {t}, {t}, {kk}")
                e(f"buffer_load_ushort v{72+8*grp+i}, {t}, {WR}, 0 offen\nbuffer_load_ushort v{76+8*grp+i}, {t}, {WI}, 0 offen")
        d = sT[4]
        e(f"s_lshr_b32 {d}, {gam}, 2\ns_lshl_b32 {d}, {d}, 6\ns_and_b32 {sT[5]}, {gam}, 3\ns_lshl_b32 {sT[5]}, {sT[5]}, 1\ns_add_u32 {d}, {d}, {sT[5]}\ns_mul_i32 {d}, {d}, 11264")
        e(f"s_and_b32 {sT[5]}, {sW}, 1\ns_mul_i32 {sT[7]}, {sT[5]}, 2816\ns_mul_i32 {sT[8]}, {sT[5]}, 2560\ns_lshr_b32 {sT[9]}, {c2}, 4\ns_mul_i32 {sT[9]}, {sT[9]}, 5632\ns_add_u32 {sT[8]}, {sT[8]}, {sT[9]}")
        e(f"s_cmp_eq_u32 {isg0}, 1\ns_cselect_b32 {sT[7]}, {sT[8]}, {sT[7]}\ns_cselect_b32 {sT[14]}, {f2h(0.25)}, {f2h(0.5)}")
        e(f"s_add_u32 {d}, {d}, {sT[7]}\ns_add_u32 {d}, {d}, {WS_WT}")
        e(f"s_cmp_ge_u32 {sW}, 2\ns_cselect_b32 {d}, {d}, {OOB}\ns_cmp_eq_u32 {part}, 0\ns_cselect_b32 {d}, {d}, {OOB}\ns_cmp_eq_u32 {isneg}, 0\ns_cselect_b32 {d}, {d}, {OOB}")
        e(f"v_lshlrev_b32 v111, 2, v1\nv_add_u32 v111, {d}, v111")

    def trig8(self, dst, f, base, ks, fn="cos", tmp=116, fix=None):
        e = self.e
        for j, k in enumerate(ks):
            if fix and j in fix: e(f"v_mov_b32 v{tmp+j}, {fix[j]}")
            elif k == 0: e(f"v_mov_b32 v{tmp+j}, {base}")
            else: e(f"v_fmamk_f32 v{tmp+j}, {f}, {f2h(float(k))}, {base}")
        for j in range(8): e(f"v_{fn}_f32 v{tmp+j}, v{tmp+j}")
        for j in range(4): e(f"v_cvt_pk_bf16_f32 v{dst+j}, v{tmp+2*j}, v{tmp+2*j+1}")
    def p1_consts(self):
        e = self.e
        e(f"v_lshrrev_b32 v5, 2, v2\ns_lshl_b32 {sT[0]}, {sMUP}, 2\nv_add_u32 v5, {sT[0]}, v5\nv_and_b32 v6, 3, v2")
        e("v_cmp_eq_u32 vcc, 0, v5\nv_cmp_eq_u32 s[96:97], 1, v6\ns_and_b64 vcc, vcc, s[96:97]")
        e("v_cndmask_b32 v5, v5, 16, vcc\nv_cndmask_b32 v7, v6, 0, vcc")
        e(f"v_cvt_f32_u32 v5, v5\nv_mul_f32 v5, {f2h(1/32)}, v5\nv_cvt_f32_u32 v7, v7\nv_mul_f32 v7, {f2h(-0.25)}, v7")
        e("v_lshrrev_b32 v8, 1, v3\nv_lshlrev_b32 v8, 4, v8\nv_and_b32 v9, 1, v3\nv_lshl_add_u32 v8, v9, 2, v8\nv_cvt_f32_u32 v8, v8\nv_fma_f32 v7, v8, v5, v7")
        self.trig8(96, "v5", "v7", [0, 1, 2, 3, 8, 9, 10, 11])
        e("v_cmp_gt_u32 vcc, 2, v6")
        for j in range(4): e(f"v_cndmask_b32 v{96+j}, 0, v{96+j}, vcc")
        e(f"v_cvt_f32_u32 v5, v2\nv_lshlrev_b32 v6, 6, v3\nv_add_u32 v6, {sB}, v6\nv_cvt_f32_u32 v6, v6\nv_mul_f32 v6, v5, v6")
        e(f"v_mul_f32 v6, {f2h(1/2048)}, v6\nv_mul_f32 v5, {f2h(1/8)}, v5")
        self.trig8(100, "v5", "v6", list(range(8)))
        e(f"v_add_f32 v6, {f2h(-0.25)}, v6\nv_cvt_f32_u32 v7, v3\nv_mul_f32 v7, 0.5, v7\nv_cmp_eq_u32 vcc, 0, v2\nv_cndmask_b32 v6, v6, v7, vcc")
        self.trig8(104, "v5", "v6", list(range(8)))
    def dft64(self):
        e = self.e
        d = sT[0]
        e(f"s_lshr_b32 {d}, {sW}, 1\ns_cmp_eq_u32 {sGAM}, 0\ns_cselect_b32 {d}, {d}, 0")
        e(f"v_lshlrev_b32 v5, 3, v3\nv_add_u32 v5, {d}, v5\nv_cvt_f32_u32 v5, v5")
        e(f"v_lshlrev_b32 v6, 1, v2\nv_add_u32 v6, {d}, v6\nv_cvt_f32_u32 v6, v6\nv_mul_f32 v6, {f2h(1/256)}, v6")
        for tau in range(4):
            if tau: e(f"v_add_f32 v6, {f2h(32/256)}, v6")
            e("v_mul_f32 v7, v5, v6")
            for t in range(2):
                ks = [64*t + 32*(j >> 2) + 2*(j & 3) for j in range(8)]
                tmp = 116
                for j, k in enumerate(ks):
                    if k == 0: e(f"v_mov_b32 v{tmp+j}, v7")
                    else: e(f"v_fmamk_f32 v{tmp+j}, v6, {f2h(float(k))}, v7")
                for j in range(8): e(f"v_sin_f32 v{tmp+8+j}, v{tmp+j}\nv_cos_f32 v{tmp+j}, v{tmp+j}")
                for j in range(4): e(f"v_cvt_pk_bf16_f32 v{192+8*tau+4*t+j}, v{tmp+2*j}, v{tmp+2*j+1}")
                for j in range(4): e(f"v_cvt_pk_bf16_f32 v{224+8*tau+4*t+j}, v{tmp+8+2*j}, v{tmp+8+2*j+1}")

    def p1(self):
        e = self.e
        e(f"v_lshrrev_b32 v5, 3, v0\nv_mul_u32_u24 v6, {XP1}, v5\nv_and_b32 v7, 7, v0\nv_lshl_add_u32 v6, v7, 4, v6")
        e(f"v_and_b32 v7, 3, v5\nv_lshlrev_b32 v7, 5, v7\nv_lshrrev_b32 v5, 2, v5\nv_lshl_add_u32 v7, v5, 2, v7")
        e(f"v_and_b32 v8, 3, v1\nv_mul_u32_u24 v8, {XP1}, v8\nv_lshrrev_b32 v9, 1, v3\nv_lshlrev_b32 v9, 4, v9\nv_and_b32 v10, 1, v3\nv_lshl_add_u32 v9, v10, 2, v9")
        e(f"v_bfe_u32 v10, v1, 2, 2\nv_add_u32 v9, v9, v10\nv_mul_u32_u24 v9, 40, v9\nv_add_u32 v8, v8, v9")
        e(f"s_lshl_b32 {sT[0]}, {sW}, 3\nv_add_u32 v9, {sT[0]}, v8")
        e(f"v_mul_u32_u24 v10, {TP}, v1\ns_lshl_b32 {sT[0]}, {sW}, 5\nv_add_u32 v11, {sT[0]}, v10")
        e(f"v_lshlrev_b32 v12, 5, v3")
        self.stamp()
        for i in range(10): e(f"ds_write_b128 v6, {vr(16+4*i)} offset:{L_XS1+128*i}")
        self.stamp()
        e("v_mov_b32 v116, 0\nv_mov_b32 v117, 0\nv_mov_b32 v118, 0\nv_mov_b32 v119, 0\ns_mov_b32 %s, 0x3f803f80" % sT[0])
        for i in range(40):
            e(f"v_dot2_f32_bf16 v{116+(i&1)}, v{16+i}, {sT[0]}, v{116+(i&1)}\nv_dot2_f32_bf16 v{118+(i&1)}, v{16+i}, v{16+i}, v{118+(i&1)}")
        e("v_add_f32 v116, v116, v117\nv_add_f32 v118, v118, v119")
        for m in ("quad_perm:[1,0,3,2]", "quad_perm:[2,3,0,1]", "row_half_mirror"):
            e(f"v_add_f32_dpp v116, v116, v116 {m} row_mask:0xf bank_mask:0xf\nv_add_f32_dpp v118, v118, v118 {m} row_mask:0xf bank_mask:0xf")
        e(f"v_mul_f32 v116, {f2h(1/640)}, v116\nv_mul_f32 v118, {f2h(1/640)}, v118\nv_fma_f32 v118, -v116, v116, v118\nv_max_f32 v118, 0, v118")
        e(f"v_add_f32 v118, {f2h(EPS)}, v118\nv_rsq_f32 v118, v118\nv_mul_f32 v118, {f2h(2/(2048*640))}, v118\nv_mul_f32 v116, v116, v118\nv_mul_f32 v116, {f2h(-32.0)}, v116")
        e(f"ds_write_b32 v7, v118 offset:{L_STAT}\nds_write_b32 v7, v116 offset:{L_STAT+128}")
        e(f"v_lshrrev_b32 v13, 4, v0\nv_mul_u32_u24 v13, {AP}, v13\nv_lshl_add_u32 v13, v2, 4, v13\nv_add_u32 v13, {L_AUX1}, v13")
        for i in range(2):
            e(f"ds_write_b128 v13, {vr(56+4*i)} offset:{16*AP*i}\nds_write_b128 v13, {vr(64+4*i)} offset:{L_AUX2-L_AUX1+16*AP*i}")
        e.barrier()
        self.stamp()
        RS, OFF, AF, D1, A2, D2, PK = 172, 180, 16, 140, 116, 16, 132
        e(f"ds_read_b128 {vr(RS)}, v12 offset:{L_STAT}\nds_read_b128 {vr(RS+4)}, v12 offset:{L_STAT+16}")
        e(f"ds_read_b128 {vr(OFF)}, v12 offset:{L_STAT+128}\nds_read_b128 {vr(OFF+4)}, v12 offset:{L_STAT+144}")
        e(f"s_cmp_eq_u32 {sMUP}, 0\ns_cselect_b64 s[96:97], -1, 0\nv_cmp_eq_u32 vcc, 0, v2\ns_and_b64 vcc, vcc, s[96:97]")
        for t in range(8): e(f"v_cndmask_b32 v{OFF+t}, 0, v{OFF+t}, vcc")
        for (adr, qoff, wadr, woff) in (("v9", 0, "v11", 0), ("v8", 32, "v10", 128)):
            for t in range(8):
                for h in range(2):
                    e(f"ds_read_b64_tr_b16 {vr(AF+4*t+2*h, 2)}, {adr} offset:{L_XS1+t*4*XP1+h*320+qoff}")
            for t in range(8): e(f"{MF} {vr(D1+4*t)}, {vr(AF+4*t)}, {vr(96)}, 0")
            for t in range(8):
                s = "[0,%d,%d]" % (t & 1, t & 1); sh = "[1,%d,%d]" % (t & 1, t & 1)
                for u in range(2):
                    e(f"v_pk_fma_f32 {vr(D1+4*t+2*u, 2)}, {vr(D1+4*t+2*u, 2)}, {vr(RS+(t & ~1), 2)}, {vr(OFF+(t & ~1), 2)} op_sel:{s} op_sel_hi:{sh}")
            for r in range(4):
                for u in range(4): e(f"v_cvt_pk_bf16_f32 v{A2+4*r+u}, v{D1+8*u+r}, v{D1+8*u+4+r}")
            for r in range(4):
                for al in range(2): e(f"{MF} {vr(D2+8*r+4*al)}, {vr(A2+4*r)}, {vr(100+4*al)}, 0")
            for al in range(2):
                for be in range(2):
                    for u in range(2):
                        e(f"v_cvt_pk_bf16_f32 v{PK+4*al+2*be+u}, v{D2+8*(2*u)+4*al+be}, v{D2+8*(2*u+1)+4*al+be}")
            for al in range(2): e(f"ds_write_b128 {wadr}, {vr(PK+4*al)} offset:{L_TST+woff+16*al}")
        self.vdiv("v5", "v1", 10, 63); e("v_mul_u32_u24 v6, 10, v5\nv_sub_u32 v6, v1, v6\nv_lshlrev_b32 v6, 4, v6")
        e(f"s_lshl_b32 {sT[0]}, {sW}, 4\ns_lshl_b32 {sT[1]}, {sMUP}, 2\ns_add_u32 {sT[1]}, {sT[1]}, {sW}\ns_lshl_b32 {sT[2]}, {sB}, 8\ns_add_u32 {sT[2]}, {sT[2]}, {WS_T}")
        for i in range(3):
            e(f"v_add_u32 v7, {6*i}, v5\nv_mov_b32 v8, {sT[1]}")
            self.si_of(f"v{48+i}", "v7", "v8", "v9", False)
            e(f"v_lshlrev_b32 v{48+i}, 14, v{48+i}\nv_add3_u32 v{48+i}, v{48+i}, v6, {sT[2]}")
            e(f"v_cmp_gt_u32 vcc, {60 if i < 2 else 40}, v1\nv_mov_b32 v9, {OOB}\nv_cndmask_b32 v{48+i}, v9, v{48+i}, vcc")
            e(f"v_min_u32 v7, 15, v7\nv_add_u32 v7, {sT[0]}, v7\nv_mul_u32_u24 v7, {TP}, v7\nv_add_u32 v{52+i}, v7, v6")
        e.barrier()
        self.stamp()
        for i in range(3): e(f"ds_read_b128 {vr(16+4*i)}, v{52+i} offset:{L_TST}")
        for i in range(3): e(f"buffer_store_dwordx4 {vr(16+4*i)}, v{48+i}, {WS}, 0 offen sc1")
        e(f"v_lshrrev_b32 v5, 2, v1\nv_mul_u32_u24 v5, {AP}, v5\nv_and_b32 v6, 3, v1\nv_lshl_add_u32 v5, v6, 3, v5\ns_lshl_b32 {sT[0]}, {sW}, 6\ns_add_u32 {sT[0]}, {sT[0]}, {L_AUX1}\nv_add_u32 v5, {sT[0]}, v5\nv_lshlrev_b32 v6, 4, v1")
        for k, base in enumerate((0, L_AUX2 - L_AUX1)):
            for i in range(2):
                for h in range(2): e(f"ds_read_b64_tr_b16 {vr(28+8*k+4*i+2*h, 2)}, v5 offset:{base+16*AP*h+32*i}")
        for k in range(2):
            for i in range(2): e(f"buffer_store_dwordx4 {vr(28+8*k+4*i)}, v6, {WS}, {sT[10+2*k+i]} offen sc1")
        e(f"v_lshlrev_b32 v5, 16, v88\nv_lshlrev_b32 v6, 16, v89\nv_add_f32 v5, v5, v6\nv_lshlrev_b32 v6, 16, v92\nv_lshlrev_b32 v7, 16, v93\nv_sub_f32 v6, v6, v7")
        e(f"v_mul_f32 v5, {sT[14]}, v5\nv_mul_f32 v6, {sT[14]}, v6\nv_cvt_pk_bf16_f32 v5, v5, v6")
        e(f"buffer_store_dword v5, v111, {WS}, 0 offen sc1")
        for grp in range(3):
            for i in range(4):
                r = 72 + 8 * grp + i
                e(f"v_lshl_or_b32 v{r}, v{r+4}, 16, v{r}\nv_xor_b32 v{r}, v{r}, v{112+grp}")
            e(f"buffer_store_dwordx4 {vr(72+8*grp)}, v{108+grp}, {WS}, 0 offen sc1")
        self.stamp()

    def f1_table(self):
        e = self.e
        io, eta, g1, m1, kb, nv, sb = sT[0], sT[1], sT[2], sT[3], sT[4], sT[5], sT[6]
        e(f"s_lshr_b32 {io}, {sW}, 1\ns_and_b32 {eta}, {sW}, 1\ns_min_u32 {g1}, {sGAM}, 1\ns_min_u32 {m1}, {sMU}, 1")
        e(f"s_sub_u32 {kb}, 32, {sMU}\ns_and_b32 {sT[7]}, {g1}, {io}\ns_cmp_eq_u32 {sT[7]}, 1\ns_cselect_b32 {kb}, {kb}, {sMU}\ns_cselect_b32 {sb}, 0, 0x80000000\ns_or_b32 {sb}, {sb}, {f2h(0.25)}")
        e(f"s_lshl_b32 {sT[7]}, {io}, 4\ns_cmp_eq_u32 {m1}, 0\ns_cselect_b32 {kb}, {sT[7]}, {kb}\ns_cselect_b32 {sb}, 0, {sb}")
        e(f"s_mul_i32 {sT[7]}, {eta}, 320\ns_add_u32 {kb}, {kb}, {sT[7]}")
        e(f"s_or_b32 {sT[7]}, {g1}, {m1}\ns_lshl_b32 {sT[8]}, {eta}, 4\ns_sub_u32 {sT[9]}, 11, {eta}\ns_cmp_eq_u32 {sT[7]}, 0\ns_cselect_b32 {kb}, {sT[8]}, {kb}\ns_cselect_b32 {nv}, {sT[9]}, 10")
        e(f"s_mov_b32 s99, {nv}")
        e(f"v_lshlrev_b32 v5, 5, v2\nv_add_u32 v5, {kb}, v5\nv_cvt_f32_u32 v5, v5\nv_mul_f32 v5, {f2h(-1/640)}, v5")
        e(f"v_and_b32 v6, 1, v3\nv_mul_u32_u24 v7, {g1}, v6\nv_cvt_f32_u32 v7, v7\nv_mul_f32 v7, {f2h(-0.25)}, v7")
        e(f"v_lshrrev_b32 v8, 1, v3\nv_lshlrev_b32 v8, 2, v8\nv_cvt_f32_u32 v8, v8\nv_fma_f32 v7, v8, v5, v7\nv_add_f32 v8, {sb}, v7")
        e(f"v_cmp_gt_u32 vcc, {nv}, v2\nv_cmp_eq_u32 s[96:97], {io}, v6\ns_cmp_eq_u32 {g1}, 1\ns_cselect_b64 s[96:97], -1, s[96:97]\ns_and_b64 vcc, vcc, s[96:97]")
        e(f"v_cndmask_b32 v9, 0, -1, vcc")
        e(f"s_cmp_eq_u32 {g1}, 1\ns_cselect_b32 {sT[7]}, {io}, {eta}")
        for be in range(2):
            e(f"s_cmp_eq_u32 {sT[7]}, {be}\ns_cselect_b32 {sT[8]}, -1, 0\ns_cmp_eq_u32 {m1}, 1\ns_cselect_b32 {sT[8]}, -1, {sT[8]}\nv_and_b32 v{10+be}, {sT[8]}, v9")
        e("v_cmp_gt_u32 vcc, 2, v3\nv_cndmask_b32 v12, 0, v10, vcc\nv_cndmask_b32 v13, 0, v11, vcc")
        tmp = 116
        for t in range(3):
            for j in range(8):
                k = 8 * t + (j & 3); base = "v7" if j < 4 else "v8"
                if k == 0: e(f"v_mov_b32 v{tmp+j}, {base}")
                else: e(f"v_fmamk_f32 v{tmp+j}, v5, {f2h(float(k))}, {base}")
            for j in range(8): e(f"v_sin_f32 v{tmp+8+j}, v{tmp+j}\nv_cos_f32 v{tmp+j}, v{tmp+j}")
            for rho in range(2):
                for u in range(4):
                    d = 168 + 12 * rho + 4 * t + u
                    e(f"v_cvt_pk_bf16_f32 v{d}, v{tmp+8*rho+2*u}, v{tmp+8*rho+2*u+1}\nv_and_b32 v{d}, v{d}, v{(10 if t < 2 else 12)+(u >> 1)}")
    def f1_to_lds(self):
        e = self.e
        e(f"v_mul_u32_u24 v5, {GP}, v2\nv_lshl_add_u32 v5, v3, 4, v5\ns_mul_i32 {sT[0]}, {sW}, {32*GP}\ns_add_u32 {sT[0]}, {sT[0]}, {L_G}\nv_add_u32 v5, {sT[0]}, v5")
        for rho in range(2):
            for t in range(3): e(f"ds_write_b128 v5, {vr(168+12*rho+4*t)} offset:{16*GP*rho+64*t}")
    def x3_dma(self):
        e = self.e
        e(f"s_lshr_b32 {sT[0]}, {sW}, 1\ns_lshl_b32 {sT[1]}, {sRB}, 1\ns_add_u32 {sT[0]}, {sT[0]}, {sT[1]}\ns_and_b32 {sT[1]}, {sW}, 1\ns_lshl_b32 {sT[1]}, {sT[1]}, 10\ns_add_u32 {sT[0]}, {sT[0]}, {sT[1]}\ns_mul_i32 {sT[0]}, {sT[0]}, 1280")
        e(f"s_mul_i32 {sT[1]}, {sW}, {XS3W}")
        for i in range(21):
            e(f"v_add_u32 v5, {64*i}, v1"); self.vdiv("v6", "v5", 81, 1343)
            e(f"v_mul_u32_u24 v7, 81, v6\nv_sub_u32 v5, v5, v7\nv_min_u32 v5, 79, v5\nv_min_u32 v6, 15, v6\nv_mul_u32_u24 v6, 81920, v6\nv_lshl_add_u32 v5, v5, 4, v6")
            e(f"s_add_u32 m0, {sT[1]}, {L_XS3+1024*i}")
            e(f"buffer_load_dwordx4 v5, {X}, {sT[0]} offen lds", tag="x3")

    def p2(self):
        e = self.e
        TF, WREG, D1, Z, D2, F2, EX, D4 = 16, 64, 80, 112, 136, 16, 96, 112
        e(f"v_lshlrev_b32 v5, 8, v2\nv_lshl_add_u32 v5, v3, 4, v5\nv_mov_b32 v6, {OOB}\nv_cmp_gt_u32 vcc, 2, v3\nv_cndmask_b32 v6, v6, v5, vcc")
        e(f"s_lshl_b32 {sT[0]}, {sID}, 14\ns_add_u32 {sT[0]}, {sT[0]}, {WS_T}")
        for tb in range(1, 4): e(f"s_add_u32 {sT[tb]}, {sT[0]}, {4096*tb}")
        e(f"v_mov_b32 v8, {OOB}\nv_cmp_gt_u32 vcc, s99, v2\nv_cndmask_b32 v7, v8, v5, vcc")
        e(f"s_mul_i32 {sT[4]}, {sID}, 11264\ns_mul_i32 {sT[5]}, {sW}, 2816\ns_add_u32 {sT[4]}, {sT[4]}, {sT[5]}\ns_add_u32 {sT[4]}, {sT[4]}, {WS_WT}")
        for tb in range(4):
            for t in range(3): e(f"buffer_load_dwordx4 {vr(TF+12*tb+4*t)}, {'v5' if t < 2 else 'v6'}, {WS}, {sT[tb]} offen offset:{64*t} sc1")
        for te in range(4): e(f"buffer_load_dwordx4 {vr(WREG+4*te)}, v7, {WS}, {sT[4]} offen offset:{64*te} sc1")
        e(f"s_lshl_b32 {sT[5]}, {sJS}, 2\ns_add_u32 {sT[5]}, {sT[5]}, {sW}\ns_mul_i32 {sT[5]}, {sT[5]}, 61440\ns_add_u32 {sT[5]}, {sT[5]}, {WS_W1T}\nv_lshlrev_b32 v14, 4, v1")
        self.w1_next = 0
        def w1_loads(n):
            for _ in range(n):
                f = self.w1_next
                if f >= 60: return
                if f and f % 4 == 0: e(f"s_add_u32 {sT[5]}, {sT[5]}, 4096")
                e(f"buffer_load_dwordx4 {ar(4*f)}, v14, {WS}, {sT[5]} offen offset:{1024*(f % 4)} sc1")
                self.w1_next += 1
        self.w1_loads = w1_loads
        w1_loads(36)
        self.stamp()
        for tb in range(4):
            for rho in range(2):
                d = vr(D1 + 8 * tb + 4 * rho)
                for t in range(3): e(f"{MF} {d}, {vr(TF+12*tb+4*t)}, {vr(168+12*rho+4*t)}, {'0' if t == 0 else d}")
        self.stamp()
        for t in range(2):
            for u in range(4):
                a = D1 + 8 * (2 * t + (u >> 1)) + 2 * (u & 1)
                e(f"v_cvt_pk_bf16_f32 v{Z+12*t+u}, v{a}, v{a+1}\nv_cvt_pk_bf16_f32 v{Z+12*t+4+u}, v{a+4}, v{a+5}\nv_cvt_pk_bf16_f32 v{Z+12*t+8+u}, -v{a}, -v{a+1}")
        e(f"v_lshrrev_b32 v5, 2, v1\nv_mul_u32_u24 v5, {GP}, v5\nv_and_b32 v6, 3, v1\nv_lshl_add_u32 v5, v6, 3, v5\nv_add_u32 v5, {L_G}, v5")
        def f2_reads(lo, hi):
            for n in range(lo, hi):
                Q, w = n // 4, n % 4
                for rho in range(2): e(f"ds_read_b64_tr_b16 {vr(self.f2reg(n)+2*rho, 2)}, v5 offset:{(2*w+rho)*16*GP+32*Q}")
        self.f2reg = lambda n: (16 + 4 * n) if n < 12 else (168 + 4 * (n - 12)) if n < 18 else (8 if n == 18 else 80)
        f2_reads(0, 18)
        for te in range(4):
            for rho in range(2):
                d = vr(D2 + 8 * te + 4 * rho); first = True
                for t in range(2):
                    e(f"{MF} {d}, {vr(192+8*te+4*t)}, {vr(Z+12*t+4*rho)}, {'0' if first else d}"); first = False
                    e(f"{MF} {d}, {vr(224+8*te+4*t)}, {vr(Z+12*t+(4 if rho == 0 else 8))}, {d}")
        self.stamp()
        for te in range(4):
            for r in range(4):
                w = WREG + 4 * te + r; xr = D2 + 8 * te + r; xi = xr + 4; yr = D1 + 8 * te + r; yi = yr + 4
                e(f"v_lshlrev_b32 v6, 16, v{w}\nv_and_b32 v7, 0xffff0000, v{w}")
                e(f"v_mul_f32 v{yr}, v{xi}, v7\nv_mul_f32 v{yi}, v{xr}, v7\nv_fma_f32 v{yr}, v{xr}, v6, -v{yr}\nv_fmac_f32 v{yi}, v{xi}, v6")
        for t in range(2):
            for u in range(4):
                a = D1 + 8 * (2 * t + (u >> 1)) + 2 * (u & 1)
                e(f"v_cvt_pk_bf16_f32 v{Z+12*t+u}, v{a}, v{a+1}\nv_cvt_pk_bf16_f32 v{Z+12*t+4+u}, v{a+4}, v{a+5}\nv_cvt_pk_bf16_f32 v{Z+12*t+8+u}, -v{a+4}, -v{a+5}")
        f2_reads(18, 20)
        for tb in range(4):
            for rho in range(2):
                d = vr(D2 + 8 * tb + 4 * rho); first = True
                for t in range(2):
                    e(f"{MF} {d}, {vr(Z+12*t+4*rho)}, {vr(192+8*tb+4*t)}, {'0' if first else d}"); first = False
                    e(f"{MF} {d}, {vr(Z+12*t+(8 if rho == 0 else 0))}, {vr(224+8*tb+4*t)}, {d}")
        self.stamp()
        e(f"v_lshlrev_b32 v5, 4, v1\nv_add_u32 v5, {L_EXCH}, v5\ns_lshl_b32 {sT[0]}, {sW}, 10\nv_add_u32 v6, {sT[0]}, v5\ns_lshl_b32 {sT[0]}, {sW}, 12\nv_add_u32 v5, {sT[0]}, v5")
        for tb in range(4):
            for u in range(4): e(f"v_cvt_pk_bf16_f32 v{EX+4*tb+u}, v{D2+8*tb+2*u}, v{D2+8*tb+2*u+1}")
            e(f"ds_write_b128 v6, {vr(EX+4*tb)} offset:{4096*tb}")
        e.barrier()
        for w in range(4): e(f"ds_read_b128 {vr(EX+4*w)}, v5 offset:{1024*w}")
        for w in range(4):
            for Q in range(5):
                d = vr(D4 + 4 * Q)
                e(f"{MF} {d}, {vr(self.f2reg(4*Q+w))}, {vr(EX+4*w)}, {'0' if w == 0 else d}")
        e(f"v_mul_u32_u24 v5, {TP}, v2\nv_lshl_add_u32 v5, v3, 3, v5\ns_mul_i32 {sT[0]}, {sW}, {VSTW}\ns_add_u32 {sT[0]}, {sT[0]}, {L_VST}\nv_add_u32 v5, {sT[0]}, v5")
        self.vdiv("v6", "v1", 10, 63); e("v_mul_u32_u24 v7, 10, v6\nv_sub_u32 v7, v1, v7\nv_lshlrev_b32 v7, 4, v7")
        e(f"s_mul_i32 {sT[1]}, {sID}, 384\ns_mul_i32 {sT[2]}, {sW}, {8*98304}\ns_add_u32 {sT[1]}, {sT[1]}, {sT[2]}\ns_add_u32 {sT[1]}, {sT[1]}, {WS_V}")
        for i in range(3):
            e(f"v_add_u32 v12, {6*i}, v6\nv_min_u32 v12, 15, v12\nv_lshrrev_b32 v13, 1, v12\nv_mul_u32_u24 v13, 98304, v13\nv_and_b32 v4, 1, v12\nv_mul_u32_u24 v4, 160, v4\nv_add3_u32 v{84+i}, v13, v4, v7")
            e(f"v_cmp_gt_u32 vcc, {60 if i < 2 else 40}, v1\nv_mov_b32 v13, {OOB}\nv_cndmask_b32 v{84+i}, v13, v{84+i}, vcc")
            e(f"v_mul_u32_u24 v12, {TP}, v12\nv_add3_u32 v{88+i}, v12, v7, {sT[0]}")
        for Q in range(5):
            for u in range(2): e(f"v_cvt_pk_bf16_f32 v{136+2*Q+u}, v{D4+4*Q+2*u}, v{D4+4*Q+2*u+1}")
            e(f"ds_write_b64 v5, {vr(136+2*Q, 2)} offset:{32*Q}")
        e.wait(lg=0)
        for i in range(3): e(f"ds_read_b128 {vr(148+4*i)}, v{88+i}")
        for i in range(3): e(f"buffer_store_dwordx4 {vr(148+4*i)}, v{84+i}, {WS}, {sT[1]} offen sc1", tag="vst")
        self.stamp()

    HC = 16
    def p3_prep(self):
        e = self.e; HC = self.HC
        TMP, AF, ID, MUX = 176, 192, 200, 13
        e.wait_vm_tag("x3")
        e(f"s_mul_i32 {sT[0]}, {sW}, {XS3W}")
        e(f"v_mul_u32_u24 v5, {XP3}, v2\nv_lshl_add_u32 v5, v3, 4, v5\nv_add_u32 v5, {sT[0]}, v5")
        for j in range(4): e(f"v_mov_b32 v{204+j}, 0x3f803f80")
        for t in range(20): e(f"ds_read_b128 {vr(HC+4*t)}, v5 offset:{L_XS3+64*t}")
        for t in range(20): e(f"{MF} {vr(208)}, {vr(204)}, {vr(HC+4*t)}, {'0' if t == 0 else vr(208)}")
        e(f"v_mul_f32 v{MUX}, {f2h(1/640)}, v208")
        e("v_lshlrev_b32 v6, 2, v3\nv_sub_u32 v6, v2, v6")
        for jj in range(4): e(f"v_cmp_eq_u32 vcc, {jj}, v6\nv_cndmask_b32 v{204+jj}, 0, 1.0, vcc")
        e(f"v_cvt_pk_bf16_f32 v{ID}, v204, v205\nv_cvt_pk_bf16_f32 v{ID+1}, v206, v207")
        e(f"v_lshrrev_b32 v5, 2, v1\nv_mul_u32_u24 v5, {XP3}, v5\nv_and_b32 v6, 3, v1\nv_mul_u32_u24 v6, 160, v6\nv_add3_u32 v5, v5, v6, {sT[0]}")
        for Q in range(5):
            for tp in range(2):
                for r0 in range(4): e(f"ds_read_b64_tr_b16 {vr(AF+2*r0, 2)}, v5 offset:{L_XS3+40*(16*tp+r0)+8*Q}")
                for r0 in range(4): e(f"v_mfma_f32_16x16x16_bf16 {vr(TMP+4*r0)}, {vr(AF+2*r0, 2)}, {vr(ID, 2)}, 0")
                for r0 in range(4):
                    for q4 in range(4): e(f"v_sub_f32 v{HC+8*(4*Q+q4)+4*tp+r0}, v{TMP+4*r0+q4}, v{MUX}")
        e(f"s_and_b32 {sT[0]}, {sW}, 1\ns_lshl_b32 {sT[0]}, {sT[0]}, 4\nv_add_u32 v5, {sT[0]}, v2")
        e(f"s_lshr_b32 {sT[0]}, {sW}, 1\ns_lshl_b32 {sT[1]}, {sRB}, 1\ns_add_u32 {sT[0]}, {sT[0]}, {sT[1]}")
        e(f"v_lshlrev_b32 v6, 6, v5\nv_add_u32 v6, {sT[0]}, v6\nv_cvt_f32_u32 v6, v6\nv_mul_f32 v6, {f2h(1/2048)}, v6")
        e(f"v_lshrrev_b32 v7, 1, v3\nv_lshlrev_b32 v7, 3, v7\nv_and_b32 v8, 1, v3\nv_lshl_add_u32 v7, v8, 1, v7\nv_cvt_f32_u32 v7, v7\nv_mul_f32 v7, v6, v7\nv_add_f32 v8, {f2h(-0.25)}, v7")
        e("v_cvt_f32_u32 v5, v5\nv_mul_f32 v5, 0.5, v5\nv_cmp_eq_u32 vcc, 0, v3\nv_cndmask_b32 v9, v8, v5, vcc")
        tmp = 176
        for j in range(8):
            k = 4 * (j >> 2) + ((j & 3) >> 1); base = "v8" if j & 1 else "v7"
            if j == 1: e(f"v_mov_b32 v{tmp+j}, v9")
            elif k == 0: e(f"v_mov_b32 v{tmp+j}, {base}")
            else: e(f"v_fmamk_f32 v{tmp+j}, v6, {f2h(float(k))}, {base}")
        for j in range(8): e(f"v_cos_f32 v{tmp+j}, v{tmp+j}")
        for j in range(4): e(f"v_cvt_pk_bf16_f32 v{244+j}, v{tmp+2*j}, v{tmp+2*j+1}")
        for tp in range(2):
            e(f"v_add_u32 v5, {16*tp}, v2\nv_cvt_f32_u32 v5, v5\nv_mul_f32 v6, {f2h(1/32)}, v5\nv_lshrrev_b32 v7, 1, v3\nv_cvt_f32_u32 v7, v7")
            e(f"v_and_b32 v8, 1, v3\nv_cvt_f32_u32 v8, v8\nv_mul_f32 v8, {f2h(-0.25)}, v8\nv_fma_f32 v7, v7, v6, v8")
            e("v_mul_f32 v5, 0.5, v5\nv_cmp_eq_u32 vcc, 1, v3\nv_cndmask_b32 v9, v7, v5, vcc")
            self.trig8(248 + 4 * tp, "v6", "v7", [2 * j for j in range(8)], tmp=tmp, fix={0: "v9"})
    def v_dma(self):
        e = self.e
        for i in range(5):
            e(f"v_add_u32 v5, {64*i}, v1"); self.vdiv("v6", "v5", 10, 319)
            e(f"v_mul_u32_u24 v7, 10, v6\nv_sub_u32 v5, v5, v7\nv_mul_u32_u24 v6, 384, v6\nv_lshl_add_u32 v{176+i}, v5, 4, v6")
        e(f"s_mul_i32 {sT[0]}, {sRB}, 98304\ns_mul_i32 {sT[1]}, {sW}, {64*384}\ns_add_u32 {sT[0]}, {sT[0]}, {sT[1]}\ns_add_u32 {sT[0]}, {sT[0]}, {WS_V}")
        e(f"s_add_u32 {sT[1]}, {sT[0]}, {32*384}\ns_add_u32 {sT[2]}, {sT[0]}, 160\ns_add_u32 {sT[3]}, {sT[1]}, 160\ns_mul_i32 {sT[4]}, {sW}, 10240")
    def v_dma_issue(self):
        e = self.e
        for bp in range(2):
            for i in range(10):
                e(f"s_add_u32 m0, {sT[4]}, {L_VIN+40960*bp+1024*i}")
                e(f"buffer_load_dwordx4 v{176+i % 5}, {WS}, {sT[2*bp+i//5]} offen sc1 lds", tag="vin")

    def p3(self):
        e = self.e; HC = self.HC
        T0, AF, D1, BF, MUX = 176, 196, 212, 196, 13
        e("v_lshrrev_b32 v5, 1, v3\nv_lshlrev_b32 v5, 7, v5\nv_and_b32 v6, 1, v3\nv_lshl_add_u32 v5, v6, 2, v5\nv_bfe_u32 v6, v1, 3, 1\nv_lshl_add_u32 v5, v6, 1, v5\nv_bfe_u32 v6, v1, 1, 1\nv_add_u32 v5, v5, v6")
        e(f"v_mul_u32_u24 v5, 160, v5\nv_bfe_u32 v6, v1, 2, 1\nv_lshl_add_u32 v5, v6, 4, v5\nv_and_b32 v6, 1, v1\nv_lshl_add_u32 v5, v6, 3, v5")
        e(f"s_lshr_b32 {sT[0]}, {sW}, 1\ns_mul_i32 {sT[0]}, {sT[0]}, 40960\nv_add_u32 v5, {sT[0]}, v5")
        e.wait_vm_tag("vin")
        e.barrier()
        self.stamp()
        def rd(dst, tau, Q):
            for h in range(2): e(f"ds_read_b64_tr_b16 {vr(dst+2*h, 2)}, v5 offset:{L_VIN+h*10240+tau*1280+32*Q}")
        for Q in range(5): rd(D1 + 4 * Q, 0, Q)
        for Q in range(5): e(f"{MF} {vr(T0+4*Q)}, {vr(D1+4*Q)}, {vr(244)}, 0")
        e(f"v_add_f32 v6, v{T0}, v{T0+1}")
        for n in range(2, 20): e(f"v_add_f32 v6, v6, v{T0+n}")
        e(f"v_mul_f32 v6, {f2h(1/20)}, v6\nv_cmp_eq_u32 vcc, 0, v3\nv_cndmask_b32 v6, 0, v6, vcc")
        for n in range(20): e(f"v_sub_f32 v{T0+n}, v{T0+n}, v6")
        for Q in range(5):
            for base in (1, 5):
                ts = range(base, min(base + 4, 8))
                for t in ts: rd(AF + 4 * (t - base), t, Q)
                for t in ts: e(f"{MF} {vr(D1+4*t)}, {vr(AF+4*(t-base))}, {vr(244)}, 0")
            src = lambda t: (T0 + 4 * Q) if t == 0 else (D1 + 4 * t)
            for r in range(4):
                for u in range(4): e(f"v_cvt_pk_bf16_f32 v{BF+4*r+u}, v{src(2*u)+r}, v{src(2*u+1)+r}")
            for r in range(4):
                for tp in range(2):
                    d = vr(HC + 8 * (4 * Q + r) + 4 * tp)
                    e(f"{MF} {d}, {vr(248+4*tp)}, {vr(BF+4*r)}, {d}")
        e("v_mov_b32 v7, v6\nv_permlane16_swap_b32 v6, v7\nv_add_f32 v6, v6, v7\nv_mov_b32 v7, v6\nv_permlane32_swap_b32 v6, v7\nv_add_f32 v6, v6, v7")
        e(f"v_add_f32 v{MUX}, v{MUX}, v6")
        e.barrier()
        self.stamp()
        e(f"v_lshlrev_b32 v5, 4, v1\ns_mul_i32 {sT[0]}, {sW}, 20480\nv_add_u32 v6, {sT[0]}, v5")
        for q in range(20):
            t = 176 + 4 * (q & 3)
            for u in range(4): e(f"v_cvt_pk_bf16_f32 v{t+u}, v{HC+8*q+2*u}, v{HC+8*q+2*u+1}")
            e(f"ds_write_b128 v6, {vr(t)} offset:{L_Y2+1024*q}")
        e(f"v_pk_mul_f32 v[192:193], {vr(HC, 2)}, {vr(HC, 2)}\nv_pk_mul_f32 v[194:195], {vr(HC+2, 2)}, {vr(HC+2, 2)}")
        for n in range(2, 80): e(f"v_pk_fma_f32 {vr(192+2*(n & 1), 2)}, {vr(HC+2*n, 2)}, {vr(HC+2*n, 2)}, {vr(192+2*(n & 1), 2)}")
        e("v_pk_add_f32 v[192:193], v[192:193], v[194:195]\nv_add_f32 v7, v192, v193")
        e("v_mov_b32 v8, v7\nv_permlane16_swap_b32 v7, v8\nv_add_f32 v7, v7, v8\nv_mov_b32 v8, v7\nv_permlane32_swap_b32 v7, v8\nv_add_f32 v7, v7, v8")
        e(f"v_mul_f32 v7, {f2h(1/640)}, v7\nv_add_f32 v8, {f2h(EPS)}, v7\nv_rsq_f32 v8, v8\nv_mul_f32 v7, v7, v8\nv_mul_f32 v7, v7, v8\nv_add_f32 v7, {f2h(EPS)}, v7\nv_rsq_f32 v7, v7\nv_mul_f32 v7, v7, v8")
        e(f"s_lshl_b32 {sT[0]}, {sW}, 6\ns_add_u32 {sT[0]}, {sT[0]}, {L_RHO}\nv_lshlrev_b32 v8, 2, v2\nv_add_u32 v9, {sT[0]}, v8\nds_write_b32 v9, v7\nv_add_u32 v8, {L_RHO}, v8")
        u = self.uid = self.uid + 1
        e(f"v_mul_u32_u24 v9, {HP}, v2\ns_mul_i32 {sT[0]}, {sW}, {16*HP}\ns_add_u32 {sT[0]}, {sT[0]}, {L_HS}\nv_add_u32 v9, {sT[0]}, v9\ns_and_b32 {sT[0]}, {sJS}, 3\nv_cmp_eq_u32 vcc, {sT[0]}, v3")
        e(f"s_cmp_ge_u32 {sJS}, 4")
        e("s_mov_b64 exec, vcc")
        e.branch(f"s_cbranch_scc1 L_hs1_{u}")
        for tp in range(2):
            e.begin_opt()
            for q in range(20):
                t = 196 + 4 * (q & 3); s = HC + 8 * q + 4 * tp
                e(f"v_pk_add_f32 {vr(t, 2)}, {vr(s, 2)}, v[12:13] op_sel:[0,1] op_sel_hi:[1,1]\nv_pk_add_f32 {vr(t+2, 2)}, {vr(s+2, 2)}, v[12:13] op_sel:[0,1] op_sel_hi:[1,1]")
                e(f"ds_write_b128 v9, {vr(t)} offset:{16*q}")
            e.wait(lg=0)
            e.end_opt()
            if tp == 0:
                e.branch(f"s_branch L_hs2_{u}"); e.label(f"L_hs1_{u}")
        e.label(f"L_hs2_{u}")
        e("s_mov_b64 exec, -1")
        e(f"s_mul_i32 {sT[0]}, {sJS}, 384\ns_mul_i32 {sT[1]}, {sW}, 96\ns_add_u32 {sT[0]}, {sT[0]}, {sT[1]}\nv_lshlrev_b32 v9, 3, v3")
        for ph in range(3): e(f"buffer_load_dwordx2 {vr(196+2*ph, 2)}, v9, {B1}, {sT[0]} offen offset:{32*ph}")
        for ph in range(3):
            for u2 in range(2): e(f"v_lshlrev_b32 v{204+4*ph+2*u2}, 16, v{196+2*ph+u2}\nv_and_b32 v{204+4*ph+2*u2+1}, 0xffff0000, v{196+2*ph+u2}")
        e.barrier()
        self.stamp()
        for rt in range(4): e(f"ds_read_b32 v{216+rt}, v8 offset:{64*rt}")
    def gemm1(self):
        e = self.e
        ACC, BF, BIA, RHO, T = 16, 64, 204, 216, 96
        c1 = -2 * math.sqrt(2 / math.pi) * math.log2(math.e); c2 = c1 * 0.044715
        e(f"s_mov_b32 {sT[6]}, {f2h(c1)}\ns_mov_b32 {sT[7]}, {f2h(c2)}")
        e(f"s_mul_i32 {sT[0]}, {sRB}, {4*49152}\ns_mul_i32 {sT[1]}, {sJS}, 6144\ns_add_u32 {sT[0]}, {sT[0]}, {sT[1]}\ns_add_u32 {sT[0]}, {sT[0]}, {WS_H}")
        e(f"s_lshl_b32 {sT[1]}, {sW}, 10\nv_add_u32 v6, {sT[1]}, v5")
        e(f"v_lshrrev_b32 v7, 1, v3\nv_lshlrev_b32 v7, 8, v7\nv_lshl_add_u32 v7, v2, 4, v7\nv_and_b32 v9, 1, v3\nv_lshl_add_u32 v7, v9, 3, v7\ns_lshl_b32 {sT[1]}, {sW}, 9\ns_add_u32 {sT[1]}, {sT[1]}, 4096\nv_add_u32 v7, {sT[1]}, v7")
        e(f"v_add_u32 v10, 40960, v5")
        for rt in range(4):
            def rd(q): e(f"ds_read_b128 {vr(BF+4*(q % 6))}, {'v5' if rt < 2 else 'v10'} offset:{L_Y2+20480*(rt & 1)+1024*q}")
            for q in range(4): rd(q)
            for q in range(20):
                if q + 4 < 20: rd(q + 4)
                for ph in range(3):
                    d = vr(ACC + 12 * rt + 4 * ph)
                    e(f"{MF} {d}, {ar(4*(3*q+ph))}, {vr(BF+4*(q % 6))}, {'0' if q == 0 else d}")
            a0 = ACC + 12 * rt
            for n in range(12): e(f"v_fma_f32 v{a0+n}, v{a0+n}, v{RHO+rt}, v{BIA+n}")
            for n in range(12): e(f"v_mul_f32 v{T+n}, v{a0+n}, v{a0+n}")
            for n in range(12): e(f"v_mov_b32 v{T+12}, {sT[6]}\nv_fma_f32 v{T+n}, v{T+n}, {sT[7]}, v{T+12}" if n == 0 else f"v_fma_f32 v{T+n}, v{T+n}, {sT[7]}, v{T+12}")
            for n in range(12): e(f"v_mul_f32 v{T+n}, v{T+n}, v{a0+n}")
            for n in range(12): e(f"v_exp_f32 v{T+n}, v{T+n}")
            for n in range(12): e(f"v_add_f32 v{T+n}, 1.0, v{T+n}")
            for n in range(12): e(f"v_rcp_f32 v{T+n}, v{T+n}")
            for n in range(12): e(f"v_mul_f32 v{T+n}, v{T+n}, v{a0+n}")
            for n in range(6): e(f"v_cvt_pk_bf16_f32 v{T+16+8*(rt & 1)+n}, v{T+2*n}, v{T+2*n+1}")
            e(f"buffer_store_dwordx4 {vr(T+16+8*(rt & 1))}, v6, {WS}, {sT[0]} offen sc1\nbuffer_store_dwordx2 {vr(T+20+8*(rt & 1), 2)}, v7, {WS}, {sT[0]} offen sc1")
            if rt < 3: e(f"s_add_u32 {sT[0]}, {sT[0]}, 49152")
        self.stamp()
    def w2_loads(self):
        e = self.e
        e(f"s_mul_i32 {sT[5]}, {sJS}, {240*1024}\ns_mul_i32 {sT[4]}, {sW}, 61440\ns_add_u32 {sT[5]}, {sT[5]}, {sT[4]}\ns_add_u32 {sT[5]}, {sT[5]}, {WS_W2T}")
        for f in range(60):
            if f and f % 4 == 0: e(f"s_add_u32 {sT[5]}, {sT[5]}, 4096")
            e(f"buffer_load_dwordx4 {ar(4*f)}, v14, {WS}, {sT[5]} offen offset:{1024*(f % 4)} sc1")
    def p4(self):
        e = self.e
        ACC, HF = 16, 96
        e(f"s_mul_i32 {sT[0]}, {sRB}, {4*49152}\ns_mul_i32 {sT[1]}, {sW}, 12288\ns_add_u32 {sT[0]}, {sT[0]}, {sT[1]}\ns_add_u32 {sT[0]}, {sT[0]}, {WS_H}")
        self.h_next = 0
        def hload():
            n = self.h_next
            if n >= 48: return
            rt, k = n // 12, n % 12
            if n and k % 4 == 0: e(f"s_add_u32 {sT[0]}, {sT[0]}, {4096 if k else 49152-8192}")
            e(f"buffer_load_dwordx4 {vr(HF+4*(n % 40))}, v14, {WS}, {sT[0]} offen offset:{1024*(k % 4)} sc1")
            self.h_next += 1
        for _ in range(40): hload()
        self.stamp()
        for rt in range(4):
            for k in range(12):
                n = 12 * rt + k
                for nu in range(5):
                    d = vr(ACC + 20 * rt + 4 * nu)
                    e(f"{MF} {d}, {ar(4*(5*k+nu))}, {vr(HF+4*(n % 40))}, {'0' if k == 0 else d}")
                if n >= 1: hload()
        self.stamp()
        e(f"s_mul_i32 {sT[0]}, {sW}, 5120\nv_add_u32 v5, {sT[0]}, v14\nv_add_u32 v7, 40960, v5\ns_mul_i32 {sT[0]}, {sW}, 20480\nv_add_u32 v6, {sT[0]}, v14")
        for rt in range(4):
            for nu in range(5): e(f"ds_write_b128 {'v5' if rt < 2 else 'v7'}, {vr(ACC+20*rt+4*nu)} offset:{L_PART+20480*(rt & 1)+1024*nu}")
        e(f"s_mul_i32 {sT[0]}, {sJS}, 160\nv_lshlrev_b32 v9, 3, v3")
        for nu in range(5): e(f"buffer_load_dwordx2 {vr(96+2*nu, 2)}, v9, {B2}, {sT[0]} offen offset:{32*nu}")
        e(f"v_mul_u32_u24 v8, {HP}, v2\ns_mul_i32 {sT[1]}, {sW}, {16*HP}\ns_add_u32 {sT[1]}, {sT[1]}, {L_HS}\nv_add_u32 v8, {sT[1]}, v8")
        for nu in range(5):
            e(f"v_add_u32 v10, {4*nu}, v3"); self.vdiv("v11", "v10", 5, 19)
            e(f"v_mul_u32_u24 v12, 5, v11\nv_sub_u32 v10, v10, v12\nv_lshlrev_b32 v10, 6, v10\nv_lshl_add_u32 v10, v11, 2, v10\nv_add_u32 v10, v10, v8")
            for r in range(4): e(f"ds_read_b32 v{108+4*nu+r}, v10 offset:{16*r}")
        for nu in range(5):
            for u in range(2):
                e(f"v_lshlrev_b32 v10, 16, v{96+2*nu+u}\nv_and_b32 v11, 0xffff0000, v{96+2*nu+u}\nv_add_f32 v{108+4*nu+2*u}, v{108+4*nu+2*u}, v10\nv_add_f32 v{108+4*nu+2*u+1}, v{108+4*nu+2*u+1}, v11")
        e(f"s_and_b32 {sT[1]}, {sW}, 1\ns_lshl_b32 {sT[1]}, {sT[1]}, 10\ns_lshr_b32 {sT[2]}, {sW}, 1\ns_add_u32 {sT[1]}, {sT[1]}, {sT[2]}\ns_lshl_b32 {sT[2]}, {sRB}, 1\ns_add_u32 {sT[1]}, {sT[1]}, {sT[2]}\ns_mul_i32 {sT[1]}, {sT[1]}, 1280\ns_add_u32 {sT[1]}, {sT[1]}, {sT[0]}")
        e(f"v_mul_u32_u24 v10, 81920, v2\nv_add_u32 v10, v10, v9")
        e.barrier()
        for w in range(4):
            for nu in range(5): e(f"ds_read_b128 {vr(128+20*w+4*nu)}, v6 offset:{L_PART+5120*w+1024*nu}")
        for nu in range(5):
            for w in range(4):
                for u in range(2): e(f"v_pk_add_f32 {vr(108+4*nu+2*u, 2)}, {vr(108+4*nu+2*u, 2)}, {vr(128+20*w+4*nu+2*u, 2)}")
            for u in range(2): e(f"v_cvt_pk_bf16_f32 v{96+2*nu+u}, v{108+4*nu+2*u}, v{108+4*nu+2*u+1}")
            e(f"buffer_store_dwordx2 {vr(96+2*nu, 2)}, v10, {OUT}, {sT[1]} offen offset:{32*nu}")
        self.stamp()

    def build(self):
        e = self.e
        self.prologue()
        self.aux_loads()
        self.p1_consts()
        self.dft64()
        e(f"s_mul_i32 {sTAG}, {sTAG}, 0x9E3779B1\ns_add_u32 {sTAG}, {sTAG}, 0x7F4A7C15")
        self.p1()
        self.f1_table()
        e.wait(vm=0); e.barrier()
        self.stamp()
        self.set_flag(WS_F1, sID)
        if self.stop <= 1: return self.finish()
        self.f1_to_lds()
        self.x3_dma()
        e(f"v_mul_u32_u24 v8, {FS}, v0\nv_add_u32 v9, {WS_F1}, v8")
        self.stamp()
        self.poll("v9", "v10")
        e.barrier()
        self.stamp()
        self.p2()
        self.w1_loads(24)
        self.p3_prep()
        e.wait_vm_tag("vst"); e.barrier()
        self.stamp()
        self.set_flag(WS_F2, sID)
        if self.stop <= 2: return self.finish()
        self.v_dma()
        e(f"v_mul_u32_u24 v8, {FS}, v0\nv_add_u32 v9, {WS_F2}, v8")
        self.stamp()
        self.poll("v9", "v10")
        self.stamp()
        self.v_dma_issue()
        u = self.uid = self.uid + 1
        self.p3()
        e(f"s_or_b32 {sT[0]}, {sID}, {sW}\ns_cmp_lg_u32 {sT[0]}, 0")
        e.branch(f"s_cbranch_scc1 L_ne{u}")
        e.begin_opt()
        e(f"v_mov_b32 v10, {sTAG}\nv_mov_b32 v11, {WS_E}\ns_mov_b64 exec, 1\nbuffer_store_dword v10, v11, {WS}, 0 offen sc1\ns_mov_b64 exec, -1")
        e.end_opt()
        e.label(f"L_ne{u}")
        self.gemm1()
        e.wait(vm=0); e.barrier()
        self.stamp()
        e(f"s_lshl_b32 {sT[0]}, {sRB}, 3\ns_add_u32 {sT[0]}, {sT[0]}, {sJS}")
        self.set_flag(WS_F3, sT[0])
        if self.stop <= 3: return self.finish()
        self.w2_loads()
        e(f"s_lshl_b32 {sT[0]}, {sRB}, 3\ns_lshl_b32 {sT[1]}, {sW}, 1\ns_add_u32 {sT[0]}, {sT[0]}, {sT[1]}\nv_and_b32 v8, 1, v1\nv_add_u32 v8, {sT[0]}, v8\nv_mul_u32_u24 v8, {FS}, v8\nv_add_u32 v9, {WS_F3}, v8")
        self.poll("v9", "v10")
        self.stamp()
        self.p4()
        return self.finish()

HEAD = """; GFNet spectral mixer + channel MLP, one persistent launch (generated by gen.py)
; kernarg: x, w_r, w_i, B_x(unused), w1, b1, w2, b2, out, debug, ws
; @launch grid=(256,1,1) block=(256,1,1) lds=%d
.amdgcn_target "amdgcn-amd-amdhsa--gfx950"
.text
.globl %s
.p2align 8
.type %s,@function
%s:
""" % (LDS_BYTES, KNAME, KNAME, KNAME)
TAIL = """.section .rodata,"a"
.p2align 6
.amdhsa_kernel %s
  .amdhsa_next_free_vgpr 512
  .amdhsa_next_free_sgpr 102
  .amdhsa_accum_offset 256
  .amdhsa_group_segment_fixed_size 0
  .amdhsa_kernarg_size 88
  .amdhsa_user_sgpr_count 2
  .amdhsa_user_sgpr_kernarg_segment_ptr 1
  .amdhsa_system_sgpr_workgroup_id_x 1
  .amdhsa_float_denorm_mode_32 3
.end_amdhsa_kernel
""" % KNAME

def generate(**kw):
    g = Gen(**kw); g.build()
    return HEAD + g.e.text() + TAIL, g

if __name__ == "__main__":
    import argparse
    ap = argparse.ArgumentParser(); ap.add_argument("-o", default="k.s"); ap.add_argument("--stop", type=int, default=99); ap.add_argument("--stamps", action="store_true")
    a = ap.parse_args()
    s, g = generate(stop=a.stop, stamps=a.stamps)
    open(a.o, "w").write(s)
    print(len(s), "bytes", g.e.count, "nops", g.e.nops, "stamps", g.nst)
```

```python
import sys, math
from asm import Emit, f2h

KNAME = "sequential_preLN__spectral_gfnet__mixer_channel_mlp__prompt_kernel"
WS_E = 0
WS_F1 = 0x10000; WS_F2 = 0x20000; WS_F3 = 0x30000
FS = 128
WS_T = 0x100000
WS_WT = 0x600000
WS_V = 0xA00000
WS_W1T = 0xE00000
WS_W2T = 0x1000000
WS_H = 0x1200000
WS_DBG = 0x2000000
OOB = 0x40000000
L_XS1 = 0; XP1 = 1344
L_STAT = 43008
L_TST = 43520; TP = 176
L_AUX1 = 55296; L_AUX2 = 64512; AP = 288
L_XS3 = 0; XP3 = 1296; XS3W = 21504
L_G = 86016; GP = 224
L_EXCH = 114688
L_VST = 131072; VSTW = 2816
L_VIN = 0
L_Y2 = 0
L_RHO = 86016
L_HS = 142336; HP = 336
L_PART = 0
LDS_BYTES = 163840
EPS = 1e-5

X, WR, WI, W1, B1, W2, B2, OUT, WS = [f"s[{n}:{n+3}]" for n in (4, 8, 12, 16, 20, 24, 28, 32, 60)]
sID = "s2"; sW = "s64"; sTAG = "s65"; sXCD = "s66"; sLOC = "s67"
sB = "s68"; sMUP = "s69"; sGAM = "s70"; sMU = "s71"; sRB = "s72"; sJS = "s73"
sT = ["s%d" % n for n in range(74, 96)]

def vr(a, n=4): return f"v[{a}:{a+n-1}]" if n > 1 else f"v{a}"
def ar(a, n=4): return f"a[{a}:{a+n-1}]" if n > 1 else f"a{a}"
MF = "v_mfma_f32_16x16x32_bf16"

class Gen:
    def __init__(self, stop=99, stamps=False, spin=200000, dbg=None):
        self.dbg = dbg; self.nall = 0
        if dbg is not None: stamps = True
        self.e = Emit(); self.stop = stop; self.stamps = stamps; self.spin = spin; self.nst = 0; self.uid = 0
    def stamp(self):
        if not self.stamps: return
        e = self.e
        k = self.nall; self.nall += 1
        if self.dbg is not None:
            if k == 0:
                e("s_memrealtime s[96:97]"); e.wait(lg=0); e("v_writelane_b32 v15, s96, 14")
            if k not in self.dbg: return
        n = self.nst; self.nst += 1
        e("s_memtime s[96:97]"); e.wait(lg=0)
        e(f"v_writelane_b32 v15, s96, {n}")
    def sdiv(self, dst, src, d, maxv):
        for sh in range(8, 24):
            m = -(-(1 << sh) // d)
            if all((x * m) >> sh == x // d for x in range(maxv + 1)): break
        else: raise ValueError
        self.e(f"s_mul_i32 {dst}, {src}, {m}\ns_lshr_b32 {dst}, {dst}, {sh}")
    def vdiv(self, dst, src, d, maxv):
        for sh in range(8, 24):
            m = -(-(1 << sh) // d)
            if all((x * m) >> sh == x // d for x in range(maxv + 1)): break
        else: raise ValueError
        assert m < (1 << 24) and maxv * m < (1 << 32)
        self.e(f"v_mul_u32_u24 {dst}, {m}, {src}\nv_lshrrev_b32 {dst}, {sh}, {dst}")
    def si_of(self, dst, gam, mu, t0, scalar):
        e = self.e
        e(f"v_lshrrev_b32 {dst}, 2, {gam}\nv_lshlrev_b32 {dst}, 6, {dst}")
        e(f"v_lshrrev_b32 {t0}, 1, {mu}\nv_lshl_add_u32 {dst}, {t0}, 3, {dst}")
        e(f"v_and_b32 {t0}, 3, {gam}\nv_lshl_add_u32 {dst}, {t0}, 1, {dst}")
        e(f"v_and_b32 {t0}, 1, {mu}\nv_add_u32 {dst}, {dst}, {t0}")
    def poll(self, vaddr, vtmp, soff="0"):
        e = self.e; self.uid += 1; u = self.uid
        e(f"s_mov_b32 {sT[20]}, 0")
        e.label(f"L_poll{u}")
        e(f"buffer_load_dword {vtmp}, {vaddr}, {WS}, {soff} offen sc1")
        e.wait(vm=0)
        e(f"v_cmp_ne_u32 vcc, {sTAG}, {vtmp}")
        e.branch(f"s_cbranch_vccz L_got{u}")
        e(f"s_add_u32 {sT[20]}, {sT[20]}, 1\ns_cmp_gt_u32 {sT[20]}, {self.spin}")
        e.branch(f"s_cbranch_scc1 L_got{u}")
        e("s_sleep 2")
        e.branch(f"s_branch L_poll{u}")
        e.label(f"L_got{u}")
    def set_flag(self, base, sidx):
        e = self.e; self.uid += 1; u = self.uid
        e(f"s_cmp_lg_u32 {sW}, 0")
        e.branch(f"s_cbranch_scc1 L_nf{u}")
        e.begin_opt()
        e(f"s_mul_i32 {sT[20]}, {sidx}, {FS}\ns_add_u32 {sT[20]}, {sT[20]}, {base}")
        e(f"v_mov_b32 v4, {sTAG}\nv_mov_b32 v5, {sT[20]}")
        e("s_mov_b64 exec, 1")
        e(f"buffer_store_dword v4, v5, {WS}, 0 offen sc1")
        e("s_mov_b64 exec, -1")
        e.end_opt()
        e.label(f"L_nf{u}")
    def finish(self):
        e = self.e
        if self.dbg is not None:
            e.wait(vm=0)
            e("s_memtime s[96:97]"); e.wait(lg=0); e("v_writelane_b32 v15, s96, 13")
            e("s_memrealtime s[96:97]"); e.wait(lg=0); e("v_writelane_b32 v15, s96, 15")
            e("v_readlane_b32 s96, v15, 0\nv_readlane_b32 s97, v15, 14\nv_mov_b32 v14, s96\nv_mov_b32 v13, s97\nv_cmp_le_u32 vcc, 14, v1\nv_cndmask_b32 v14, v14, v13, vcc\nv_sub_u32 v15, v15, v14")
            e(f"s_load_dwordx2 s[96:97], s[0:1], 72\ns_mov_b32 s92, s96\ns_and_b32 s93, s97, 0xffff\ns_mov_b32 s94, 64\ns_mov_b32 s95, 0x20000")
            e(f"s_or_b32 {sT[0]}, {sID}, {sW}\ns_cmp_eq_u32 {sT[0]}, 0\ns_cselect_b32 {sT[0]}, 0, 1024")
            e(f"v_lshlrev_b32 v14, 2, v1\nbuffer_store_dword v15, v14, s[92:95], {sT[0]} offen")
        elif self.stamps:
            e(f"s_lshl_b32 {sT[0]}, {sID}, 2\ns_add_u32 {sT[0]}, {sT[0]}, {sW}\ns_lshl_b32 {sT[0]}, {sT[0]}, 8\ns_add_u32 {sT[0]}, {sT[0]}, {WS_DBG}")
            e(f"v_lshlrev_b32 v14, 2, v1\nbuffer_store_dword v15, v14, {WS}, {sT[0]} offen")
        e.label("L_end")
        e("s_endpgm")

    def prologue(self):
        e = self.e
        e(f"s_cmp_ge_u32 {sID}, 256")
        e.branch("s_cbranch_scc1 L_end")
        e("s_load_dwordx16 s[36:51], s[0:1], 0\ns_load_dwordx2 s[52:53], s[0:1], 64\ns_load_dwordx2 s[56:57], s[0:1], 80")
        if self.stamps: e("v_mov_b32 v15, 0")
        e("v_and_b32 v1, 63, v0\nv_and_b32 v2, 15, v0\nv_bfe_u32 v3, v0, 4, 2\nv_lshrrev_b32 v4, 6, v0")
        e(f"v_readfirstlane_b32 {sW}, v4")
        e(f"s_and_b32 {sXCD}, {sID}, 7\ns_lshr_b32 {sLOC}, {sID}, 3")
        e(f"s_lshr_b32 {sB}, {sLOC}, 2\ns_lshl_b32 {sT[0]}, {sXCD}, 3\ns_add_u32 {sB}, {sB}, {sT[0]}\ns_and_b32 {sMUP}, {sLOC}, 3")
        e(f"s_lshr_b32 {sRB}, {sLOC}, 3\ns_lshl_b32 {sT[0]}, {sXCD}, 2\ns_add_u32 {sRB}, {sRB}, {sT[0]}\ns_and_b32 {sJS}, {sLOC}, 7")
        e(f"s_lshr_b32 {sGAM}, {sID}, 6\ns_lshl_b32 {sGAM}, {sGAM}, 2\ns_bfe_u32 {sT[0]}, {sID}, 0x20001\ns_or_b32 {sGAM}, {sGAM}, {sT[0]}")
        e(f"s_bfe_u32 {sMU}, {sID}, 0x30003\ns_lshl_b32 {sMU}, {sMU}, 1\ns_and_b32 {sT[0]}, {sID}, 1\ns_or_b32 {sMU}, {sMU}, {sT[0]}")
        e(f"v_lshrrev_b32 v4, 3, v0\nv_lshlrev_b32 v4, 6, v4\nv_add_u32 v4, {sB}, v4\nv_mul_u32_u24 v4, 1280, v4\nv_and_b32 v5, 7, v0\nv_lshl_add_u32 v4, v5, 4, v4")
        for (n, p, size) in ((4, 36, 2621440), (8, 38, 1314816), (12, 40, 1314816), (16, 44, 1966080), (20, 46, 3072),
                             (24, 48, 1966080), (28, 50, 1280), (32, 52, 2621440), (60, 56, 0x10000000)):
            e(f"s_mov_b32 s{n}, s{p}\ns_and_b32 s{n+1}, s{p+1}, 0xffff\ns_mov_b32 s{n+2}, {size}\ns_mov_b32 s{n+3}, 0x20000")
            if n == 4:
                for i in range(10): e(f"buffer_load_dwordx4 {vr(16+4*i)}, v4, {X}, 0 offen offset:{128*i}")
        e(f"s_load_dword {sTAG}, s[56:57], {WS_E}")
        self.stamp()

    def aux_loads(self):
        e = self.e
        q, fb, k2, nb, js, st, inv = sT[0], sT[1], sT[2], sT[3], sT[4], sT[5], sT[6]
        self.sdiv(q, sID, 12, 255); e(f"s_mul_i32 {fb}, {q}, 12\ns_sub_u32 {fb}, {sID}, {fb}")
        self.sdiv(k2, sID, 5, 255); e(f"s_mul_i32 {nb}, {k2}, 5\ns_sub_u32 {nb}, {sID}, {nb}")
        self.sdiv(js, k2, 6, 63); e(f"s_mul_i32 {st}, {js}, 6\ns_sub_u32 {st}, {k2}, {st}")
        e(f"s_cmp_lt_u32 {sID}, 240\ns_cselect_b32 {inv}, 0, {OOB}")
        e("v_lshrrev_b32 v5, 4, v0\nv_and_b32 v6, 15, v0")
        e(f"s_mul_i32 {sT[7]}, {q}, 3072\ns_lshl_b32 {sT[8]}, {fb}, 8\ns_add_u32 {sT[7]}, {sT[7]}, {sT[8]}\ns_add_u32 {sT[7]}, {sT[7]}, {inv}")
        e(f"v_mul_u32_u24 v7, {20*3072}, v5\nv_lshl_add_u32 v7, v6, 4, v7\nv_add_u32 v7, {sT[7]}, v7")
        e(f"s_mov_b32 {sT[8]}, {16*20*3072}")
        e(f"buffer_load_dwordx4 {vr(56)}, v7, {W1}, 0 offen\nbuffer_load_dwordx4 {vr(60)}, v7, {W1}, {sT[8]} offen")
        e(f"v_lshrrev_b32 v8, 3, v5\nv_mul_u32_u24 v8, 48, v8\nv_bfe_u32 v9, v5, 2, 1\nv_lshl_add_u32 v8, v9, 3, v8\nv_and_b32 v9, 3, v5\nv_add_u32 v8, v8, v9")
        e(f"s_cmp_lt_u32 {st}, 4\ns_cselect_b64 vcc, -1, 0")
        e(f"v_cndmask_b32 v8, v8, v5, vcc")
        e(f"s_mul_i32 {sT[7]}, {st}, 48\ns_mul_i32 {sT[8]}, {st}, 96\ns_sub_u32 {sT[8]}, {sT[8]}, {4*96-32}")
        e(f"s_cmp_lt_u32 {st}, 4\ns_cselect_b32 {sT[7]}, {sT[7]}, {sT[8]}\ns_cselect_b32 {sT[8]}, 16, 4\ns_mul_i32 {sT[8]}, {sT[8]}, 1280")
        e(f"s_mul_i32 {sT[9]}, {js}, 192\ns_add_u32 {sT[7]}, {sT[7]}, {sT[9]}\ns_mul_i32 {sT[7]}, {sT[7]}, 1280")
        e(f"s_lshl_b32 {sT[9]}, {nb}, 8\ns_add_u32 {sT[7]}, {sT[7]}, {sT[9]}\ns_add_u32 {sT[7]}, {sT[7]}, {inv}")
        e(f"v_mul_u32_u24 v8, 1280, v8\nv_lshl_add_u32 v8, v6, 4, v8\nv_add_u32 v8, {sT[7]}, v8")
        e(f"buffer_load_dwordx4 {vr(64)}, v8, {W2}, 0 offen\nbuffer_load_dwordx4 {vr(68)}, v8, {W2}, {sT[8]} offen")
        for i in range(2):
            ft, a, b_, c = sT[7], sT[8], sT[9], sT[14]
            e(f"s_lshl_b32 {ft}, {fb}, 3\ns_lshl_b32 {a}, {sW}, 1\ns_add_u32 {ft}, {ft}, {a}\ns_add_u32 {ft}, {ft}, {i}")
            self.sdiv(a, ft, 3, 127); e(f"s_mul_i32 {b_}, {a}, 3\ns_sub_u32 {b_}, {ft}, {b_}")
            e(f"s_mul_i32 {a}, {a}, 60\ns_add_u32 {a}, {a}, {b_}\ns_mul_i32 {b_}, {q}, 3\ns_add_u32 {a}, {a}, {b_}")
            e(f"s_lshl_b32 {a}, {a}, 10\ns_add_u32 {a}, {a}, {WS_W1T}\ns_add_u32 {sT[10+i]}, {a}, {inv}")
            e(f"s_lshl_b32 {ft}, {nb}, 3\ns_lshl_b32 {a}, {sW}, 1\ns_add_u32 {ft}, {ft}, {a}\ns_add_u32 {ft}, {ft}, {i}")
            self.sdiv(a, ft, 5, 63); e(f"s_mul_i32 {b_}, {a}, 5\ns_sub_u32 {b_}, {ft}, {b_}")
            e(f"s_mul_i32 {a}, {a}, 48\ns_add_u32 {a}, {a}, {k2}\ns_mul_i32 {a}, {a}, 5\ns_add_u32 {a}, {a}, {b_}")
            e(f"s_lshl_b32 {a}, {a}, 10\ns_add_u32 {a}, {a}, {WS_W2T}\ns_add_u32 {sT[12+i]}, {a}, {inv}")
        c2, part = sRB, sJS
        gam, cd, isg0, isneg = sT[0], sT[1], sT[2], sT[3]
        e(f"s_sub_u32 {gam}, 32, {c2}\ns_cmp_gt_u32 {c2}, 16\ns_cselect_b32 {gam}, {gam}, {c2}\ns_cselect_b32 {isneg}, 1, 0\ns_and_b32 {gam}, {gam}, 15")
        e(f"s_cmp_eq_u32 {gam}, 0\ns_cselect_b32 {cd}, {c2}, {gam}\ns_cselect_b32 {isg0}, 1, 0")
        e(f"v_lshlrev_b32 v5, 7, v2\nv_add_u32 v5, {cd}, v5")
        for grp in range(3):
            kk, m, n, sg, mu, dst, t = "v6", "v7", "v8", "v9", "v10", f"v{108+grp}", "v11"
            e(f"s_mul_i32 {sT[4]}, {part}, 40\ns_lshl_b32 {sT[5]}, {sW}, 2\ns_add_u32 {sT[4]}, {sT[4]}, {sT[5]}\ns_add_u32 {sT[4]}, {sT[4]}, {16*grp}")
            e(f"v_add_u32 {kk}, {sT[4]}, v3")
            e(f"v_and_b32 {m}, 31, {kk}")
            e(f"v_cmp_lt_u32 vcc, 16, {m}\ns_cmp_eq_u32 {isg0}, 1\ns_cselect_b64 s[96:97], vcc, 0\ns_cmp_eq_u32 {isneg}, 1\ns_cselect_b64 s[96:97], -1, s[96:97]")
            e(f"v_sub_u32 {t}, 640, {kk}\nv_cndmask_b32 {n}, {kk}, {t}, s[96:97]")
            e(f"v_cndmask_b32 {sg}, 1, -1, s[96:97]")
            e(f"v_mov_b32 {t}, 0x80000000\nv_cndmask_b32 v{112+grp}, 0, {t}, s[96:97]")
            e(f"v_and_b32 {m}, 31, {n}\nv_lshrrev_b32 {n}, 5, {n}")
            e(f"v_sub_u32 {t}, 32, {m}\nv_min_u32 {mu}, {t}, {m}\nv_and_b32 {mu}, 15, {mu}")
            e(f"v_mov_b32 v12, {gam}")
            self.si_of(dst, "v12", mu, t, False)
            e(f"v_mul_u32_u24 {dst}, 11264, {dst}")
            e(f"v_lshrrev_b32 {t}, 4, {m}\ns_lshr_b32 {sT[5]}, {c2}, 4\nv_mov_b32 v12, {sT[5]}")
            e(f"s_cmp_eq_u32 {isg0}, 1\ns_cselect_b64 vcc, -1, 0\nv_cndmask_b32 v12, {t}, v12, vcc")
            e(f"v_mul_u32_u24 v12, 5632, v12\nv_add_u32 {dst}, {dst}, v12")
            e(f"v_cmp_le_u32 vcc, 10, {n}\nv_cndmask_b32 v12, 0, 1, vcc\nv_add_u32 v12, v12, {n}\nv_lshlrev_b32 v12, 8, v12")
            e(f"v_mul_u32_u24 {t}, 2816, {t}\nv_lshl_add_u32 {t}, {n}, 8, {t}")
            e(f"v_cmp_eq_u32 vcc, 0, {mu}\ns_cmp_eq_u32 {isg0}, 1\ns_cselect_b64 vcc, vcc, 0\nv_cndmask_b32 v12, v12, {t}, vcc")
            e(f"v_add_u32 {dst}, {dst}, v12\nv_lshl_add_u32 {dst}, v2, 4, {dst}\nv_add_u32 {dst}, {WS_WT}, {dst}")
            e(f"v_mov_b32 {t}, {OOB}\nv_cmp_eq_u32 vcc, 0, {kk}\nv_cndmask_b32 {dst}, {dst}, {t}, vcc")
            if grp == 2:
                e(f"s_cmp_ge_u32 {sW}, 2\ns_cselect_b64 s[98:99], -1, 0\nv_cndmask_b32 {dst}, {dst}, {t}, s[98:99]")
                e(f"s_and_b32 {sT[5]}, {sW}, 1\ns_mul_i32 {sT[5]}, {sT[5]}, 320\nv_mov_b32 v12, {sT[5]}\nv_cndmask_b32 {kk}, {kk}, v12, s[98:99]")
            e(f"v_lshlrev_b32 {kk}, 1, {kk}")
            for i in range(4):
                e(f"v_add_u32 {t}, {32*i}, v5\nv_mul_i32_i24 {t}, {t}, {sg}")
                if grp == 2 and i < 2:
                    e(f"v_lshlrev_b32 v12, 5, v1\nv_add_u32 v12, {c2}, v12")
                    if i == 1: e("v_sub_u32 v12, 0, v12")
                    e(f"v_cndmask_b32 {t}, {t}, v12, s[98:99]")
                e(f"v_and_b32 {t}, 2047, {t}\nv_mul_u32_u24 {t}, 642, {t}\nv_add_u32 {t}, {t}, {kk}")
                e(f"buffer_load_ushort v{72+8*grp+i}, {t}, {WR}, 0 offen\nbuffer_load_ushort v{76+8*grp+i}, {t}, {WI}, 0 offen")
        d = sT[4]
        e(f"s_lshr_b32 {d}, {gam}, 2\ns_lshl_b32 {d}, {d}, 6\ns_and_b32 {sT[5]}, {gam}, 3\ns_lshl_b32 {sT[5]}, {sT[5]}, 1\ns_add_u32 {d}, {d}, {sT[5]}\ns_mul_i32 {d}, {d}, 11264")
        e(f"s_and_b32 {sT[5]}, {sW}, 1\ns_mul_i32 {sT[7]}, {sT[5]}, 2816\ns_mul_i32 {sT[8]}, {sT[5]}, 2560\ns_lshr_b32 {sT[9]}, {c2}, 4\ns_mul_i32 {sT[9]}, {sT[9]}, 5632\ns_add_u32 {sT[8]}, {sT[8]}, {sT[9]}")
        e(f"s_cmp_eq_u32 {isg0}, 1\ns_cselect_b32 {sT[7]}, {sT[8]}, {sT[7]}\ns_cselect_b32 {sT[14]}, {f2h(0.25)}, {f2h(0.5)}")
        e(f"s_add_u32 {d}, {d}, {sT[7]}\ns_add_u32 {d}, {d}, {WS_WT}")
        e(f"s_cmp_ge_u32 {sW}, 2\ns_cselect_b32 {d}, {d}, {OOB}\ns_cmp_eq_u32 {part}, 0\ns_cselect_b32 {d}, {d}, {OOB}\ns_cmp_eq_u32 {isneg}, 0\ns_cselect_b32 {d}, {d}, {OOB}")
        e(f"v_lshlrev_b32 v111, 2, v1\nv_add_u32 v111, {d}, v111")

    def trig8(self, dst, f, base, ks, fn="cos", tmp=116, fix=None):
        e = self.e
        for j, k in enumerate(ks):
            if fix and j in fix: e(f"v_mov_b32 v{tmp+j}, {fix[j]}")
            elif k == 0: e(f"v_mov_b32 v{tmp+j}, {base}")
            else: e(f"v_fmamk_f32 v{tmp+j}, {f}, {f2h(float(k))}, {base}")
        for j in range(8): e(f"v_{fn}_f32 v{tmp+j}, v{tmp+j}")
        for j in range(4): e(f"v_cvt_pk_bf16_f32 v{dst+j}, v{tmp+2*j}, v{tmp+2*j+1}")
    def p1_consts(self):
        e = self.e
        e(f"v_lshrrev_b32 v5, 2, v2\ns_lshl_b32 {sT[0]}, {sMUP}, 2\nv_add_u32 v5, {sT[0]}, v5\nv_and_b32 v6, 3, v2")
        e("v_cmp_eq_u32 vcc, 0, v5\nv_cmp_eq_u32 s[96:97], 1, v6\ns_and_b64 vcc, vcc, s[96:97]")
        e("v_cndmask_b32 v5, v5, 16, vcc\nv_cndmask_b32 v7, v6, 0, vcc")
        e(f"v_cvt_f32_u32 v5, v5\nv_mul_f32 v5, {f2h(1/32)}, v5\nv_cvt_f32_u32 v7, v7\nv_mul_f32 v7, {f2h(-0.25)}, v7")
        e("v_lshrrev_b32 v8, 1, v3\nv_lshlrev_b32 v8, 4, v8\nv_and_b32 v9, 1, v3\nv_lshl_add_u32 v8, v9, 2, v8\nv_cvt_f32_u32 v8, v8\nv_fma_f32 v7, v8, v5, v7")
        self.trig8(96, "v5", "v7", [0, 1, 2, 3, 8, 9, 10, 11])
        e("v_cmp_gt_u32 vcc, 2, v6")
        for j in range(4): e(f"v_cndmask_b32 v{96+j}, 0, v{96+j}, vcc")
        e(f"v_cvt_f32_u32 v5, v2\nv_lshlrev_b32 v6, 6, v3\nv_add_u32 v6, {sB}, v6\nv_cvt_f32_u32 v6, v6\nv_mul_f32 v6, v5, v6")
        e(f"v_mul_f32 v6, {f2h(1/2048)}, v6\nv_mul_f32 v5, {f2h(1/8)}, v5")
        self.trig8(100, "v5", "v6", list(range(8)))
        e(f"v_add_f32 v6, {f2h(-0.25)}, v6\nv_cvt_f32_u32 v7, v3\nv_mul_f32 v7, 0.5, v7\nv_cmp_eq_u32 vcc, 0, v2\nv_cndmask_b32 v6, v6, v7, vcc")
        self.trig8(104, "v5", "v6", list(range(8)))
    def dft64(self):
        e = self.e
        d = sT[0]
        e(f"s_lshr_b32 {d}, {sW}, 1\ns_cmp_eq_u32 {sGAM}, 0\ns_cselect_b32 {d}, {d}, 0")
        e(f"v_lshlrev_b32 v5, 3, v3\nv_add_u32 v5, {d}, v5\nv_cvt_f32_u32 v5, v5")
        e(f"v_lshlrev_b32 v6, 1, v2\nv_add_u32 v6, {d}, v6\nv_cvt_f32_u32 v6, v6\nv_mul_f32 v6, {f2h(1/256)}, v6")
        for tau in range(4):
            if tau: e(f"v_add_f32 v6, {f2h(32/256)}, v6")
            e("v_mul_f32 v7, v5, v6")
            for t in range(2):
                ks = [64*t + 32*(j >> 2) + 2*(j & 3) for j in range(8)]
                tmp = 116
                for j, k in enumerate(ks):
                    if k == 0: e(f"v_mov_b32 v{tmp+j}, v7")
                    else: e(f"v_fmamk_f32 v{tmp+j}, v6, {f2h(float(k))}, v7")
                for j in range(8): e(f"v_sin_f32 v{tmp+8+j}, v{tmp+j}\nv_cos_f32 v{tmp+j}, v{tmp+j}")
                for j in range(4): e(f"v_cvt_pk_bf16_f32 v{192+8*tau+4*t+j}, v{tmp+2*j}, v{tmp+2*j+1}")
                for j in range(4): e(f"v_cvt_pk_bf16_f32 v{224+8*tau+4*t+j}, v{tmp+8+2*j}, v{tmp+8+2*j+1}")

    def p1(self):
        e = self.e
        e(f"v_lshrrev_b32 v5, 3, v0\nv_mul_u32_u24 v6, {XP1}, v5\nv_and_b32 v7, 7, v0\nv_lshl_add_u32 v6, v7, 4, v6")
        e(f"v_and_b32 v7, 3, v5\nv_lshlrev_b32 v7, 5, v7\nv_lshrrev_b32 v5, 2, v5\nv_lshl_add_u32 v7, v5, 2, v7")
        e(f"v_and_b32 v8, 3, v1\nv_mul_u32_u24 v8, {XP1}, v8\nv_lshrrev_b32 v9, 1, v3\nv_lshlrev_b32 v9, 4, v9\nv_and_b32 v10, 1, v3\nv_lshl_add_u32 v9, v10, 2, v9")
        e(f"v_bfe_u32 v10, v1, 2, 2\nv_add_u32 v9, v9, v10\nv_mul_u32_u24 v9, 40, v9\nv_add_u32 v8, v8, v9")
        e(f"s_lshl_b32 {sT[0]}, {sW}, 3\nv_add_u32 v9, {sT[0]}, v8")
        e(f"v_mul_u32_u24 v10, {TP}, v1\ns_lshl_b32 {sT[0]}, {sW}, 5\nv_add_u32 v11, {sT[0]}, v10")
        e(f"v_lshlrev_b32 v12, 5, v3")
        self.stamp()
        for i in range(10): e(f"ds_write_b128 v6, {vr(16+4*i)} offset:{L_XS1+128*i}")
        self.stamp()
        e("v_mov_b32 v116, 0\nv_mov_b32 v117, 0\nv_mov_b32 v118, 0\nv_mov_b32 v119, 0\ns_mov_b32 %s, 0x3f803f80" % sT[0])
        for i in range(40):
            e(f"v_dot2_f32_bf16 v{116+(i&1)}, v{16+i}, {sT[0]}, v{116+(i&1)}\nv_dot2_f32_bf16 v{118+(i&1)}, v{16+i}, v{16+i}, v{118+(i&1)}")
        e("v_add_f32 v116, v116, v117\nv_add_f32 v118, v118, v119")
        for m in ("quad_perm:[1,0,3,2]", "quad_perm:[2,3,0,1]", "row_half_mirror"):
            e(f"v_add_f32_dpp v116, v116, v116 {m} row_mask:0xf bank_mask:0xf\nv_add_f32_dpp v118, v118, v118 {m} row_mask:0xf bank_mask:0xf")
        e(f"v_mul_f32 v116, {f2h(1/640)}, v116\nv_mul_f32 v118, {f2h(1/640)}, v118\nv_fma_f32 v118, -v116, v116, v118\nv_max_f32 v118, 0, v118")
        e(f"v_add_f32 v118, {f2h(EPS)}, v118\nv_rsq_f32 v118, v118\nv_mul_f32 v118, {f2h(2/(2048*640))}, v118\nv_mul_f32 v116, v116, v118\nv_mul_f32 v116, {f2h(-32.0)}, v116")
        e(f"ds_write_b32 v7, v118 offset:{L_STAT}\nds_write_b32 v7, v116 offset:{L_STAT+128}")
        e(f"v_lshrrev_b32 v13, 4, v0\nv_mul_u32_u24 v13, {AP}, v13\nv_lshl_add_u32 v13, v2, 4, v13\nv_add_u32 v13, {L_AUX1}, v13")
        for i in range(2):
            e(f"ds_write_b128 v13, {vr(56+4*i)} offset:{16*AP*i}\nds_write_b128 v13, {vr(64+4*i)} offset:{L_AUX2-L_AUX1+16*AP*i}")
        e.barrier()
        self.stamp()
        RS, OFF, AF, D1, A2, D2, PK = 172, 180, 16, 140, 116, 16, 132
        e(f"ds_read_b128 {vr(RS)}, v12 offset:{L_STAT}\nds_read_b128 {vr(RS+4)}, v12 offset:{L_STAT+16}")
        e(f"ds_read_b128 {vr(OFF)}, v12 offset:{L_STAT+128}\nds_read_b128 {vr(OFF+4)}, v12 offset:{L_STAT+144}")
        e(f"s_cmp_eq_u32 {sMUP}, 0\ns_cselect_b64 s[96:97], -1, 0\nv_cmp_eq_u32 vcc, 0, v2\ns_and_b64 vcc, vcc, s[96:97]")
        for t in range(8): e(f"v_cndmask_b32 v{OFF+t}, 0, v{OFF+t}, vcc")
        for (adr, qoff, wadr, woff) in (("v9", 0, "v11", 0), ("v8", 32, "v10", 128)):
            for t in range(8):
                for h in range(2):
                    e(f"ds_read_b64_tr_b16 {vr(AF+4*t+2*h, 2)}, {adr} offset:{L_XS1+t*4*XP1+h*320+qoff}")
            for t in range(8): e(f"{MF} {vr(D1+4*t)}, {vr(AF+4*t)}, {vr(96)}, 0")
            for t in range(8):
                s = "[0,%d,%d]" % (t & 1, t & 1); sh = "[1,%d,%d]" % (t & 1, t & 1)
                for u in range(2):
                    e(f"v_pk_fma_f32 {vr(D1+4*t+2*u, 2)}, {vr(D1+4*t+2*u, 2)}, {vr(RS+(t & ~1), 2)}, {vr(OFF+(t & ~1), 2)} op_sel:{s} op_sel_hi:{sh}")
            for r in range(4):
                for u in range(4): e(f"v_cvt_pk_bf16_f32 v{A2+4*r+u}, v{D1+8*u+r}, v{D1+8*u+4+r}")
            for r in range(4):
                for al in range(2): e(f"{MF} {vr(D2+8*r+4*al)}, {vr(A2+4*r)}, {vr(100+4*al)}, 0")
            for al in range(2):
                for be in range(2):
                    for u in range(2):
                        e(f"v_cvt_pk_bf16_f32 v{PK+4*al+2*be+u}, v{D2+8*(2*u)+4*al+be}, v{D2+8*(2*u+1)+4*al+be}")
            for al in range(2): e(f"ds_write_b128 {wadr}, {vr(PK+4*al)} offset:{L_TST+woff+16*al}")
        self.vdiv("v5", "v1", 10, 63); e("v_mul_u32_u24 v6, 10, v5\nv_sub_u32 v6, v1, v6\nv_lshlrev_b32 v6, 4, v6")
        e(f"s_lshl_b32 {sT[0]}, {sW}, 4\ns_lshl_b32 {sT[1]}, {sMUP}, 2\ns_add_u32 {sT[1]}, {sT[1]}, {sW}\ns_lshl_b32 {sT[2]}, {sB}, 8\ns_add_u32 {sT[2]}, {sT[2]}, {WS_T}")
        for i in range(3):
            e(f"v_add_u32 v7, {6*i}, v5\nv_mov_b32 v8, {sT[1]}")
            self.si_of(f"v{48+i}", "v7", "v8", "v9", False)
            e(f"v_lshlrev_b32 v{48+i}, 14, v{48+i}\nv_add3_u32 v{48+i}, v{48+i}, v6, {sT[2]}")
            e(f"v_cmp_gt_u32 vcc, {60 if i < 2 else 40}, v1\nv_mov_b32 v9, {OOB}\nv_cndmask_b32 v{48+i}, v9, v{48+i}, vcc")
            e(f"v_min_u32 v7, 15, v7\nv_add_u32 v7, {sT[0]}, v7\nv_mul_u32_u24 v7, {TP}, v7\nv_add_u32 v{52+i}, v7, v6")
        e.barrier()
        self.stamp()
        for i in range(3): e(f"ds_read_b128 {vr(16+4*i)}, v{52+i} offset:{L_TST}")
        for i in range(3): e(f"buffer_store_dwordx4 {vr(16+4*i)}, v{48+i}, {WS}, 0 offen sc1")
        e(f"v_lshrrev_b32 v5, 2, v1\nv_mul_u32_u24 v5, {AP}, v5\nv_and_b32 v6, 3, v1\nv_lshl_add_u32 v5, v6, 3, v5\ns_lshl_b32 {sT[0]}, {sW}, 6\ns_add_u32 {sT[0]}, {sT[0]}, {L_AUX1}\nv_add_u32 v5, {sT[0]}, v5\nv_lshlrev_b32 v6, 4, v1")
        for k, base in enumerate((0, L_AUX2 - L_AUX1)):
            for i in range(2):
                for h in range(2): e(f"ds_read_b64_tr_b16 {vr(28+8*k+4*i+2*h, 2)}, v5 offset:{base+16*AP*h+32*i}")
        for k in range(2):
            for i in range(2): e(f"buffer_store_dwordx4 {vr(28+8*k+4*i)}, v6, {WS}, {sT[10+2*k+i]} offen sc1")
        e(f"v_lshlrev_b32 v5, 16, v88\nv_lshlrev_b32 v6, 16, v89\nv_add_f32 v5, v5, v6\nv_lshlrev_b32 v6, 16, v92\nv_lshlrev_b32 v7, 16, v93\nv_sub_f32 v6, v6, v7")
        e(f"v_mul_f32 v5, {sT[14]}, v5\nv_mul_f32 v6, {sT[14]}, v6\nv_cvt_pk_bf16_f32 v5, v5, v6")
        e(f"buffer_store_dword v5, v111, {WS}, 0 offen sc1")
        for grp in range(3):
            for i in range(4):
                r = 72 + 8 * grp + i
                e(f"v_lshl_or_b32 v{r}, v{r+4}, 16, v{r}\nv_xor_b32 v{r}, v{r}, v{112+grp}")
            e(f"buffer_store_dwordx4 {vr(72+8*grp)}, v{108+grp}, {WS}, 0 offen sc1")
        self.stamp()

    def f1_table(self):
        e = self.e
        io, eta, g1, m1, kb, nv, sb = sT[0], sT[1], sT[2], sT[3], sT[4], sT[5], sT[6]
        e(f"s_lshr_b32 {io}, {sW}, 1\ns_and_b32 {eta}, {sW}, 1\ns_min_u32 {g1}, {sGAM}, 1\ns_min_u32 {m1}, {sMU}, 1")
        e(f"s_sub_u32 {kb}, 32, {sMU}\ns_and_b32 {sT[7]}, {g1}, {io}\ns_cmp_eq_u32 {sT[7]}, 1\ns_cselect_b32 {kb}, {kb}, {sMU}\ns_cselect_b32 {sb}, 0, 0x80000000\ns_or_b32 {sb}, {sb}, {f2h(0.25)}")
        e(f"s_lshl_b32 {sT[7]}, {io}, 4\ns_cmp_eq_u32 {m1}, 0\ns_cselect_b32 {kb}, {sT[7]}, {kb}\ns_cselect_b32 {sb}, 0, {sb}")
        e(f"s_mul_i32 {sT[7]}, {eta}, 320\ns_add_u32 {kb}, {kb}, {sT[7]}")
        e(f"s_or_b32 {sT[7]}, {g1}, {m1}\ns_lshl_b32 {sT[8]}, {eta}, 4\ns_sub_u32 {sT[9]}, 11, {eta}\ns_cmp_eq_u32 {sT[7]}, 0\ns_cselect_b32 {kb}, {sT[8]}, {kb}\ns_cselect_b32 {nv}, {sT[9]}, 10")
        e(f"s_mov_b32 s99, {nv}")
        e(f"v_lshlrev_b32 v5, 5, v2\nv_add_u32 v5, {kb}, v5\nv_cvt_f32_u32 v5, v5\nv_mul_f32 v5, {f2h(-1/640)}, v5")
        e(f"v_and_b32 v6, 1, v3\nv_mul_u32_u24 v7, {g1}, v6\nv_cvt_f32_u32 v7, v7\nv_mul_f32 v7, {f2h(-0.25)}, v7")
        e(f"v_lshrrev_b32 v8, 1, v3\nv_lshlrev_b32 v8, 2, v8\nv_cvt_f32_u32 v8, v8\nv_fma_f32 v7, v8, v5, v7\nv_add_f32 v8, {sb}, v7")
        e(f"v_cmp_gt_u32 vcc, {nv}, v2\nv_cmp_eq_u32 s[96:97], {io}, v6\ns_cmp_eq_u32 {g1}, 1\ns_cselect_b64 s[96:97], -1, s[96:97]\ns_and_b64 vcc, vcc, s[96:97]")
        e(f"v_cndmask_b32 v9, 0, -1, vcc")
        e(f"s_cmp_eq_u32 {g1}, 1\ns_cselect_b32 {sT[7]}, {io}, {eta}")
        for be in range(2):
            e(f"s_cmp_eq_u32 {sT[7]}, {be}\ns_cselect_b32 {sT[8]}, -1, 0\ns_cmp_eq_u32 {m1}, 1\ns_cselect_b32 {sT[8]}, -1, {sT[8]}\nv_and_b32 v{10+be}, {sT[8]}, v9")
        e("v_cmp_gt_u32 vcc, 2, v3\nv_cndmask_b32 v12, 0, v10, vcc\nv_cndmask_b32 v13, 0, v11, vcc")
        tmp = 116
        for t in range(3):
            for j in range(8):
                k = 8 * t + (j & 3); base = "v7" if j < 4 else "v8"
                if k == 0: e(f"v_mov_b32 v{tmp+j}, {base}")
                else: e(f"v_fmamk_f32 v{tmp+j}, v5, {f2h(float(k))}, {base}")
            for j in range(8): e(f"v_sin_f32 v{tmp+8+j}, v{tmp+j}\nv_cos_f32 v{tmp+j}, v{tmp+j}")
            for rho in range(2):
                for u in range(4):
                    d = 168 + 12 * rho + 4 * t + u
                    e(f"v_cvt_pk_bf16_f32 v{d}, v{tmp+8*rho+2*u}, v{tmp+8*rho+2*u+1}\nv_and_b32 v{d}, v{d}, v{(10 if t < 2 else 12)+(u >> 1)}")
    def f1_to_lds(self):
        e = self.e
        e(f"v_mul_u32_u24 v5, {GP}, v2\nv_lshl_add_u32 v5, v3, 4, v5\ns_mul_i32 {sT[0]}, {sW}, {32*GP}\ns_add_u32 {sT[0]}, {sT[0]}, {L_G}\nv_add_u32 v5, {sT[0]}, v5")
        for rho in range(2):
            for t in range(3): e(f"ds_write_b128 v5, {vr(168+12*rho+4*t)} offset:{16*GP*rho+64*t}")
    def x3_dma(self):
        e = self.e
        e(f"s_lshr_b32 {sT[0]}, {sW}, 1\ns_lshl_b32 {sT[1]}, {sRB}, 1\ns_add_u32 {sT[0]}, {sT[0]}, {sT[1]}\ns_and_b32 {sT[1]}, {sW}, 1\ns_lshl_b32 {sT[1]}, {sT[1]}, 10\ns_add_u32 {sT[0]}, {sT[0]}, {sT[1]}\ns_mul_i32 {sT[0]}, {sT[0]}, 1280")
        e(f"s_mul_i32 {sT[1]}, {sW}, {XS3W}")
        for i in range(21):
            e(f"v_add_u32 v5, {64*i}, v1"); self.vdiv("v6", "v5", 81, 1343)
            e(f"v_mul_u32_u24 v7, 81, v6\nv_sub_u32 v5, v5, v7\nv_min_u32 v5, 79, v5\nv_min_u32 v6, 15, v6\nv_mul_u32_u24 v6, 81920, v6\nv_lshl_add_u32 v5, v5, 4, v6")
            e(f"s_add_u32 m0, {sT[1]}, {L_XS3+1024*i}")
            e(f"buffer_load_dwordx4 v5, {X}, {sT[0]} offen lds", tag="x3")

    def p2(self):
        e = self.e
        TF, WREG, D1, Z, D2, F2, EX, D4 = 16, 64, 80, 112, 136, 16, 96, 112
        e(f"v_lshlrev_b32 v5, 8, v2\nv_lshl_add_u32 v5, v3, 4, v5\nv_mov_b32 v6, {OOB}\nv_cmp_gt_u32 vcc, 2, v3\nv_cndmask_b32 v6, v6, v5, vcc")
        e(f"s_lshl_b32 {sT[0]}, {sID}, 14\ns_add_u32 {sT[0]}, {sT[0]}, {WS_T}")
        for tb in range(1, 4): e(f"s_add_u32 {sT[tb]}, {sT[0]}, {4096*tb}")
        e(f"v_mov_b32 v8, {OOB}\nv_cmp_gt_u32 vcc, s99, v2\nv_cndmask_b32 v7, v8, v5, vcc")
        e(f"s_mul_i32 {sT[4]}, {sID}, 11264\ns_mul_i32 {sT[5]}, {sW}, 2816\ns_add_u32 {sT[4]}, {sT[4]}, {sT[5]}\ns_add_u32 {sT[4]}, {sT[4]}, {WS_WT}")
        for tb in range(4):
            for t in range(3): e(f"buffer_load_dwordx4 {vr(TF+12*tb+4*t)}, {'v5' if t < 2 else 'v6'}, {WS}, {sT[tb]} offen offset:{64*t} sc1")
        for te in range(4): e(f"buffer_load_dwordx4 {vr(WREG+4*te)}, v7, {WS}, {sT[4]} offen offset:{64*te} sc1")
        e(f"s_lshl_b32 {sT[5]}, {sJS}, 2\ns_add_u32 {sT[5]}, {sT[5]}, {sW}\ns_mul_i32 {sT[5]}, {sT[5]}, 61440\ns_add_u32 {sT[5]}, {sT[5]}, {WS_W1T}\nv_lshlrev_b32 v14, 4, v1")
        self.w1_next = 0
        def w1_loads(n):
            for _ in range(n):
                f = self.w1_next
                if f >= 60: return
                if f and f % 4 == 0: e(f"s_add_u32 {sT[5]}, {sT[5]}, 4096")
                e(f"buffer_load_dwordx4 {ar(4*f)}, v14, {WS}, {sT[5]} offen offset:{1024*(f % 4)} sc1")
                self.w1_next += 1
        self.w1_loads = w1_loads
        w1_loads(36)
        self.stamp()
        for tb in range(4):
            for rho in range(2):
                d = vr(D1 + 8 * tb + 4 * rho)
                for t in range(3): e(f"{MF} {d}, {vr(TF+12*tb+4*t)}, {vr(168+12*rho+4*t)}, {'0' if t == 0 else d}")
        self.stamp()
        for t in range(2):
            for u in range(4):
                a = D1 + 8 * (2 * t + (u >> 1)) + 2 * (u & 1)
                e(f"v_cvt_pk_bf16_f32 v{Z+12*t+u}, v{a}, v{a+1}\nv_cvt_pk_bf16_f32 v{Z+12*t+4+u}, v{a+4}, v{a+5}\nv_cvt_pk_bf16_f32 v{Z+12*t+8+u}, -v{a}, -v{a+1}")
        e(f"v_lshrrev_b32 v5, 2, v1\nv_mul_u32_u24 v5, {GP}, v5\nv_and_b32 v6, 3, v1\nv_lshl_add_u32 v5, v6, 3, v5\nv_add_u32 v5, {L_G}, v5")
        def f2_reads(lo, hi):
            for n in range(lo, hi):
                Q, w = n // 4, n % 4
                for rho in range(2): e(f"ds_read_b64_tr_b16 {vr(self.f2reg(n)+2*rho, 2)}, v5 offset:{(2*w+rho)*16*GP+32*Q}")
        self.f2reg = lambda n: (16 + 4 * n) if n < 12 else (168 + 4 * (n - 12)) if n < 18 else (8 if n == 18 else 80)
        f2_reads(0, 18)
        for te in range(4):
            for rho in range(2):
                d = vr(D2 + 8 * te + 4 * rho); first = True
                for t in range(2):
                    e(f"{MF} {d}, {vr(192+8*te+4*t)}, {vr(Z+12*t+4*rho)}, {'0' if first else d}"); first = False
                    e(f"{MF} {d}, {vr(224+8*te+4*t)}, {vr(Z+12*t+(4 if rho == 0 else 8))}, {d}")
        self.stamp()
        for te in range(4):
            for r in range(4):
                w = WREG + 4 * te + r; xr = D2 + 8 * te + r; xi = xr + 4; yr = D1 + 8 * te + r; yi = yr + 4
                e(f"v_lshlrev_b32 v6, 16, v{w}\nv_and_b32 v7, 0xffff0000, v{w}")
                e(f"v_mul_f32 v{yr}, v{xi}, v7\nv_mul_f32 v{yi}, v{xr}, v7\nv_fma_f32 v{yr}, v{xr}, v6, -v{yr}\nv_fmac_f32 v{yi}, v{xi}, v6")
        for t in range(2):
            for u in range(4):
                a = D1 + 8 * (2 * t + (u >> 1)) + 2 * (u & 1)
                e(f"v_cvt_pk_bf16_f32 v{Z+12*t+u}, v{a}, v{a+1}\nv_cvt_pk_bf16_f32 v{Z+12*t+4+u}, v{a+4}, v{a+5}\nv_cvt_pk_bf16_f32 v{Z+12*t+8+u}, -v{a+4}, -v{a+5}")
        f2_reads(18, 20)
        for tb in range(4):
            for rho in range(2):
                d = vr(D2 + 8 * tb + 4 * rho); first = True
                for t in range(2):
                    e(f"{MF} {d}, {vr(Z+12*t+4*rho)}, {vr(192+8*tb+4*t)}, {'0' if first else d}"); first = False
                    e(f"{MF} {d}, {vr(Z+12*t+(8 if rho == 0 else 0))}, {vr(224+8*tb+4*t)}, {d}")
        self.stamp()
        e(f"v_lshlrev_b32 v5, 4, v1\nv_add_u32 v5, {L_EXCH}, v5\ns_lshl_b32 {sT[0]}, {sW}, 10\nv_add_u32 v6, {sT[0]}, v5\ns_lshl_b32 {sT[0]}, {sW}, 12\nv_add_u32 v5, {sT[0]}, v5")
        for tb in range(4):
            for u in range(4): e(f"v_cvt_pk_bf16_f32 v{EX+4*tb+u}, v{D2+8*tb+2*u}, v{D2+8*tb+2*u+1}")
            e(f"ds_write_b128 v6, {vr(EX+4*tb)} offset:{4096*tb}")
        e.barrier()
        for w in range(4): e(f"ds_read_b128 {vr(EX+4*w)}, v5 offset:{1024*w}")
        for w in range(4):
            for Q in range(5):
                d = vr(D4 + 4 * Q)
                e(f"{MF} {d}, {vr(self.f2reg(4*Q+w))}, {vr(EX+4*w)}, {'0' if w == 0 else d}")
        e(f"v_mul_u32_u24 v5, {TP}, v2\nv_lshl_add_u32 v5, v3, 3, v5\ns_mul_i32 {sT[0]}, {sW}, {VSTW}\ns_add_u32 {sT[0]}, {sT[0]}, {L_VST}\nv_add_u32 v5, {sT[0]}, v5")
        self.vdiv("v6", "v1", 10, 63); e("v_mul_u32_u24 v7, 10, v6\nv_sub_u32 v7, v1, v7\nv_lshlrev_b32 v7, 4, v7")
        e(f"s_mul_i32 {sT[1]}, {sID}, 384\ns_mul_i32 {sT[2]}, {sW}, {8*98304}\ns_add_u32 {sT[1]}, {sT[1]}, {sT[2]}\ns_add_u32 {sT[1]}, {sT[1]}, {WS_V}")
        for i in range(3):
            e(f"v_add_u32 v12, {6*i}, v6\nv_min_u32 v12, 15, v12\nv_lshrrev_b32 v13, 1, v12\nv_mul_u32_u24 v13, 98304, v13\nv_and_b32 v4, 1, v12\nv_mul_u32_u24 v4, 160, v4\nv_add3_u32 v{84+i}, v13, v4, v7")
            e(f"v_cmp_gt_u32 vcc, {60 if i < 2 else 40}, v1\nv_mov_b32 v13, {OOB}\nv_cndmask_b32 v{84+i}, v13, v{84+i}, vcc")
            e(f"v_mul_u32_u24 v12, {TP}, v12\nv_add3_u32 v{88+i}, v12, v7, {sT[0]}")
        for Q in range(5):
            for u in range(2): e(f"v_cvt_pk_bf16_f32 v{136+2*Q+u}, v{D4+4*Q+2*u}, v{D4+4*Q+2*u+1}")
            e(f"ds_write_b64 v5, {vr(136+2*Q, 2)} offset:{32*Q}")
        e.wait(lg=0)
        for i in range(3): e(f"ds_read_b128 {vr(148+4*i)}, v{88+i}")
        for i in range(3): e(f"buffer_store_dwordx4 {vr(148+4*i)}, v{84+i}, {WS}, {sT[1]} offen sc1", tag="vst")
        self.stamp()

    HC = 16
    def p3_prep(self):
        e = self.e; HC = self.HC
        TMP, AF, ID, MUX = 176, 192, 200, 13
        e.wait_vm_tag("x3")
        e(f"s_mul_i32 {sT[0]}, {sW}, {XS3W}")
        e(f"v_mul_u32_u24 v5, {XP3}, v2\nv_lshl_add_u32 v5, v3, 4, v5\nv_add_u32 v5, {sT[0]}, v5")
        for j in range(4): e(f"v_mov_b32 v{204+j}, 0x3f803f80")
        for t in range(20): e(f"ds_read_b128 {vr(HC+4*t)}, v5 offset:{L_XS3+64*t}")
        for t in range(20): e(f"{MF} {vr(208)}, {vr(204)}, {vr(HC+4*t)}, {'0' if t == 0 else vr(208)}")
        e(f"v_mul_f32 v{MUX}, {f2h(1/640)}, v208")
        e("v_lshlrev_b32 v6, 2, v3\nv_sub_u32 v6, v2, v6")
        for jj in range(4): e(f"v_cmp_eq_u32 vcc, {jj}, v6\nv_cndmask_b32 v{204+jj}, 0, 1.0, vcc")
        e(f"v_cvt_pk_bf16_f32 v{ID}, v204, v205\nv_cvt_pk_bf16_f32 v{ID+1}, v206, v207")
        e(f"v_lshrrev_b32 v5, 2, v1\nv_mul_u32_u24 v5, {XP3}, v5\nv_and_b32 v6, 3, v1\nv_mul_u32_u24 v6, 160, v6\nv_add3_u32 v5, v5, v6, {sT[0]}")
        for Q in range(5):
            for tp in range(2):
                for r0 in range(4): e(f"ds_read_b64_tr_b16 {vr(AF+2*r0, 2)}, v5 offset:{L_XS3+40*(16*tp+r0)+8*Q}")
                for r0 in range(4): e(f"v_mfma_f32_16x16x16_bf16 {vr(TMP+4*r0)}, {vr(AF+2*r0, 2)}, {vr(ID, 2)}, 0")
                for r0 in range(4):
                    for q4 in range(4): e(f"v_sub_f32 v{HC+8*(4*Q+q4)+4*tp+r0}, v{TMP+4*r0+q4}, v{MUX}")
        e(f"s_and_b32 {sT[0]}, {sW}, 1\ns_lshl_b32 {sT[0]}, {sT[0]}, 4\nv_add_u32 v5, {sT[0]}, v2")
        e(f"s_lshr_b32 {sT[0]}, {sW}, 1\ns_lshl_b32 {sT[1]}, {sRB}, 1\ns_add_u32 {sT[0]}, {sT[0]}, {sT[1]}")
        e(f"v_lshlrev_b32 v6, 6, v5\nv_add_u32 v6, {sT[0]}, v6\nv_cvt_f32_u32 v6, v6\nv_mul_f32 v6, {f2h(1/2048)}, v6")
        e(f"v_lshrrev_b32 v7, 1, v3\nv_lshlrev_b32 v7, 3, v7\nv_and_b32 v8, 1, v3\nv_lshl_add_u32 v7, v8, 1, v7\nv_cvt_f32_u32 v7, v7\nv_mul_f32 v7, v6, v7\nv_add_f32 v8, {f2h(-0.25)}, v7")
        e("v_cvt_f32_u32 v5, v5\nv_mul_f32 v5, 0.5, v5\nv_cmp_eq_u32 vcc, 0, v3\nv_cndmask_b32 v9, v8, v5, vcc")
        tmp = 176
        for j in range(8):
            k = 4 * (j >> 2) + ((j & 3) >> 1); base = "v8" if j & 1 else "v7"
            if j == 1: e(f"v_mov_b32 v{tmp+j}, v9")
            elif k == 0: e(f"v_mov_b32 v{tmp+j}, {base}")
            else: e(f"v_fmamk_f32 v{tmp+j}, v6, {f2h(float(k))}, {base}")
        for j in range(8): e(f"v_cos_f32 v{tmp+j}, v{tmp+j}")
        for j in range(4): e(f"v_cvt_pk_bf16_f32 v{244+j}, v{tmp+2*j}, v{tmp+2*j+1}")
        for tp in range(2):
            e(f"v_add_u32 v5, {16*tp}, v2\nv_cvt_f32_u32 v5, v5\nv_mul_f32 v6, {f2h(1/32)}, v5\nv_lshrrev_b32 v7, 1, v3\nv_cvt_f32_u32 v7, v7")
            e(f"v_and_b32 v8, 1, v3\nv_cvt_f32_u32 v8, v8\nv_mul_f32 v8, {f2h(-0.25)}, v8\nv_fma_f32 v7, v7, v6, v8")
            e("v_mul_f32 v5, 0.5, v5\nv_cmp_eq_u32 vcc, 1, v3\nv_cndmask_b32 v9, v7, v5, vcc")
            self.trig8(248 + 4 * tp, "v6", "v7", [2 * j for j in range(8)], tmp=tmp, fix={0: "v9"})
    def v_dma(self):
        e = self.e
        for i in range(5):
            e(f"v_add_u32 v5, {64*i}, v1"); self.vdiv("v6", "v5", 10, 319)
            e(f"v_mul_u32_u24 v7, 10, v6\nv_sub_u32 v5, v5, v7\nv_mul_u32_u24 v6, 384, v6\nv_lshl_add_u32 v{176+i}, v5, 4, v6")
        e(f"s_mul_i32 {sT[0]}, {sRB}, 98304\ns_mul_i32 {sT[1]}, {sW}, {64*384}\ns_add_u32 {sT[0]}, {sT[0]}, {sT[1]}\ns_add_u32 {sT[0]}, {sT[0]}, {WS_V}")
        e(f"s_add_u32 {sT[1]}, {sT[0]}, {32*384}\ns_add_u32 {sT[2]}, {sT[0]}, 160\ns_add_u32 {sT[3]}, {sT[1]}, 160\ns_mul_i32 {sT[4]}, {sW}, 10240")
    def v_dma_issue(self):
        e = self.e
        for bp in range(2):
            for i in range(10):
                e(f"s_add_u32 m0, {sT[4]}, {L_VIN+40960*bp+1024*i}")
                e(f"buffer_load_dwordx4 v{176+i % 5}, {WS}, {sT[2*bp+i//5]} offen sc1 lds", tag="vin")

    def p3(self):
        e = self.e; HC = self.HC
        T0, AF, D1, BF, MUX = 176, 196, 212, 196, 13
        e("v_lshrrev_b32 v5, 1, v3\nv_lshlrev_b32 v5, 7, v5\nv_and_b32 v6, 1, v3\nv_lshl_add_u32 v5, v6, 2, v5\nv_bfe_u32 v6, v1, 3, 1\nv_lshl_add_u32 v5, v6, 1, v5\nv_bfe_u32 v6, v1, 1, 1\nv_add_u32 v5, v5, v6")
        e(f"v_mul_u32_u24 v5, 160, v5\nv_bfe_u32 v6, v1, 2, 1\nv_lshl_add_u32 v5, v6, 4, v5\nv_and_b32 v6, 1, v1\nv_lshl_add_u32 v5, v6, 3, v5")
        e(f"s_lshr_b32 {sT[0]}, {sW}, 1\ns_mul_i32 {sT[0]}, {sT[0]}, 40960\nv_add_u32 v5, {sT[0]}, v5")
        e.wait_vm_tag("vin")
        e.barrier()
        self.stamp()
        def rd(dst, tau, Q):
            for h in range(2): e(f"ds_read_b64_tr_b16 {vr(dst+2*h, 2)}, v5 offset:{L_VIN+h*10240+tau*1280+32*Q}")
        for Q in range(5): rd(D1 + 4 * Q, 0, Q)
        for Q in range(5): e(f"{MF} {vr(T0+4*Q)}, {vr(D1+4*Q)}, {vr(244)}, 0")
        e(f"v_add_f32 v6, v{T0}, v{T0+1}")
        for n in range(2, 20): e(f"v_add_f32 v6, v6, v{T0+n}")
        e(f"v_mul_f32 v6, {f2h(1/20)}, v6\nv_cmp_eq_u32 vcc, 0, v3\nv_cndmask_b32 v6, 0, v6, vcc")
        for n in range(20): e(f"v_sub_f32 v{T0+n}, v{T0+n}, v6")
        for Q in range(5):
            for base in (1, 5):
                ts = range(base, min(base + 4, 8))
                for t in ts: rd(AF + 4 * (t - base), t, Q)
                for t in ts: e(f"{MF} {vr(D1+4*t)}, {vr(AF+4*(t-base))}, {vr(244)}, 0")
            src = lambda t: (T0 + 4 * Q) if t == 0 else (D1 + 4 * t)
            for r in range(4):
                for u in range(4): e(f"v_cvt_pk_bf16_f32 v{BF+4*r+u}, v{src(2*u)+r}, v{src(2*u+1)+r}")
            for r in range(4):
                for tp in range(2):
                    d = vr(HC + 8 * (4 * Q + r) + 4 * tp)
                    e(f"{MF} {d}, {vr(248+4*tp)}, {vr(BF+4*r)}, {d}")
        e("v_mov_b32 v7, v6\nv_permlane16_swap_b32 v6, v7\nv_add_f32 v6, v6, v7\nv_mov_b32 v7, v6\nv_permlane32_swap_b32 v6, v7\nv_add_f32 v6, v6, v7")
        e(f"v_add_f32 v{MUX}, v{MUX}, v6")
        e.barrier()
        self.stamp()
        e(f"v_lshlrev_b32 v5, 4, v1\ns_mul_i32 {sT[0]}, {sW}, 20480\nv_add_u32 v6, {sT[0]}, v5")
        for q in range(20):
            t = 176 + 4 * (q & 3)
            for u in range(4): e(f"v_cvt_pk_bf16_f32 v{t+u}, v{HC+8*q+2*u}, v{HC+8*q+2*u+1}")
            e(f"ds_write_b128 v6, {vr(t)} offset:{L_Y2+1024*q}")
        e(f"v_pk_mul_f32 v[192:193], {vr(HC, 2)}, {vr(HC, 2)}\nv_pk_mul_f32 v[194:195], {vr(HC+2, 2)}, {vr(HC+2, 2)}")
        for n in range(2, 80): e(f"v_pk_fma_f32 {vr(192+2*(n & 1), 2)}, {vr(HC+2*n, 2)}, {vr(HC+2*n, 2)}, {vr(192+2*(n & 1), 2)}")
        e("v_pk_add_f32 v[192:193], v[192:193], v[194:195]\nv_add_f32 v7, v192, v193")
        e("v_mov_b32 v8, v7\nv_permlane16_swap_b32 v7, v8\nv_add_f32 v7, v7, v8\nv_mov_b32 v8, v7\nv_permlane32_swap_b32 v7, v8\nv_add_f32 v7, v7, v8")
        e(f"v_mul_f32 v7, {f2h(1/640)}, v7\nv_add_f32 v8, {f2h(EPS)}, v7\nv_rsq_f32 v8, v8\nv_mul_f32 v7, v7, v8\nv_mul_f32 v7, v7, v8\nv_add_f32 v7, {f2h(EPS)}, v7\nv_rsq_f32 v7, v7\nv_mul_f32 v7, v7, v8")
        e(f"s_lshl_b32 {sT[0]}, {sW}, 6\ns_add_u32 {sT[0]}, {sT[0]}, {L_RHO}\nv_lshlrev_b32 v8, 2, v2\nv_add_u32 v9, {sT[0]}, v8\nds_write_b32 v9, v7\nv_add_u32 v8, {L_RHO}, v8")
        u = self.uid = self.uid + 1
        e(f"v_mul_u32_u24 v9, {HP}, v2\ns_mul_i32 {sT[0]}, {sW}, {16*HP}\ns_add_u32 {sT[0]}, {sT[0]}, {L_HS}\nv_add_u32 v9, {sT[0]}, v9\ns_and_b32 {sT[0]}, {sJS}, 3\nv_cmp_eq_u32 vcc, {sT[0]}, v3")
        e(f"s_cmp_ge_u32 {sJS}, 4")
        e("s_mov_b64 exec, vcc")
        e.branch(f"s_cbranch_scc1 L_hs1_{u}")
        for tp in range(2):
            e.begin_opt()
            for q in range(20):
                t = 196 + 4 * (q & 3); s = HC + 8 * q + 4 * tp
                e(f"v_pk_add_f32 {vr(t, 2)}, {vr(s, 2)}, v[12:13] op_sel:[0,1] op_sel_hi:[1,1]\nv_pk_add_f32 {vr(t+2, 2)}, {vr(s+2, 2)}, v[12:13] op_sel:[0,1] op_sel_hi:[1,1]")
                e(f"ds_write_b128 v9, {vr(t)} offset:{16*q}")
            e.wait(lg=0)
            e.end_opt()
            if tp == 0:
                e.branch(f"s_branch L_hs2_{u}"); e.label(f"L_hs1_{u}")
        e.label(f"L_hs2_{u}")
        e("s_mov_b64 exec, -1")
        e(f"s_mul_i32 {sT[0]}, {sJS}, 384\ns_mul_i32 {sT[1]}, {sW}, 96\ns_add_u32 {sT[0]}, {sT[0]}, {sT[1]}\nv_lshlrev_b32 v9, 3, v3")
        for ph in range(3): e(f"buffer_load_dwordx2 {vr(196+2*ph, 2)}, v9, {B1}, {sT[0]} offen offset:{32*ph}")
        for ph in range(3):
            for u2 in range(2): e(f"v_lshlrev_b32 v{204+4*ph+2*u2}, 16, v{196+2*ph+u2}\nv_and_b32 v{204+4*ph+2*u2+1}, 0xffff0000, v{196+2*ph+u2}")
        e.barrier()
        self.stamp()
        for rt in range(4): e(f"ds_read_b32 v{216+rt}, v8 offset:{64*rt}")
    def gemm1(self):
        e = self.e
        ACC, BF, BIA, RHO, T = 16, 64, 204, 216, 96
        c1 = -2 * math.sqrt(2 / math.pi) * math.log2(math.e); c2 = c1 * 0.044715
        e(f"s_mov_b32 {sT[6]}, {f2h(c1)}\ns_mov_b32 {sT[7]}, {f2h(c2)}")
        e(f"s_mul_i32 {sT[0]}, {sRB}, {4*49152}\ns_mul_i32 {sT[1]}, {sJS}, 6144\ns_add_u32 {sT[0]}, {sT[0]}, {sT[1]}\ns_add_u32 {sT[0]}, {sT[0]}, {WS_H}")
        e(f"s_lshl_b32 {sT[1]}, {sW}, 10\nv_add_u32 v6, {sT[1]}, v5")
        e(f"v_lshrrev_b32 v7, 1, v3\nv_lshlrev_b32 v7, 8, v7\nv_lshl_add_u32 v7, v2, 4, v7\nv_and_b32 v9, 1, v3\nv_lshl_add_u32 v7, v9, 3, v7\ns_lshl_b32 {sT[1]}, {sW}, 9\ns_add_u32 {sT[1]}, {sT[1]}, 4096\nv_add_u32 v7, {sT[1]}, v7")
        e(f"v_add_u32 v10, 40960, v5")
        for rt in range(4):
            def rd(q): e(f"ds_read_b128 {vr(BF+4*(q % 6))}, {'v5' if rt < 2 else 'v10'} offset:{L_Y2+20480*(rt & 1)+1024*q}")
            for q in range(4): rd(q)
            for q in range(20):
                if q + 4 < 20: rd(q + 4)
                for ph in range(3):
                    d = vr(ACC + 12 * rt + 4 * ph)
                    e(f"{MF} {d}, {ar(4*(3*q+ph))}, {vr(BF+4*(q % 6))}, {'0' if q == 0 else d}")
            a0 = ACC + 12 * rt
            for n in range(12): e(f"v_fma_f32 v{a0+n}, v{a0+n}, v{RHO+rt}, v{BIA+n}")
            for n in range(12): e(f"v_mul_f32 v{T+n}, v{a0+n}, v{a0+n}")
            for n in range(12): e(f"v_mov_b32 v{T+12}, {sT[6]}\nv_fma_f32 v{T+n}, v{T+n}, {sT[7]}, v{T+12}" if n == 0 else f"v_fma_f32 v{T+n}, v{T+n}, {sT[7]}, v{T+12}")
            for n in range(12): e(f"v_mul_f32 v{T+n}, v{T+n}, v{a0+n}")
            for n in range(12): e(f"v_exp_f32 v{T+n}, v{T+n}")
            for n in range(12): e(f"v_add_f32 v{T+n}, 1.0, v{T+n}")
            for n in range(12): e(f"v_rcp_f32 v{T+n}, v{T+n}")
            for n in range(12): e(f"v_mul_f32 v{T+n}, v{T+n}, v{a0+n}")
            for n in range(6): e(f"v_cvt_pk_bf16_f32 v{T+16+8*(rt & 1)+n}, v{T+2*n}, v{T+2*n+1}")
            e(f"buffer_store_dwordx4 {vr(T+16+8*(rt & 1))}, v6, {WS}, {sT[0]} offen sc1\nbuffer_store_dwordx2 {vr(T+20+8*(rt & 1), 2)}, v7, {WS}, {sT[0]} offen sc1")
            if rt < 3: e(f"s_add_u32 {sT[0]}, {sT[0]}, 49152")
        self.stamp()
    def w2_loads(self):
        e = self.e
        e(f"s_mul_i32 {sT[5]}, {sJS}, {240*1024}\ns_mul_i32 {sT[4]}, {sW}, 61440\ns_add_u32 {sT[5]}, {sT[5]}, {sT[4]}\ns_add_u32 {sT[5]}, {sT[5]}, {WS_W2T}")
        for f in range(60):
            if f and f % 4 == 0: e(f"s_add_u32 {sT[5]}, {sT[5]}, 4096")
            e(f"buffer_load_dwordx4 {ar(4*f)}, v14, {WS}, {sT[5]} offen offset:{1024*(f % 4)} sc1")
    def p4(self):
        e = self.e
        ACC, HF = 16, 96
        e(f"s_mul_i32 {sT[0]}, {sRB}, {4*49152}\ns_mul_i32 {sT[1]}, {sW}, 12288\ns_add_u32 {sT[0]}, {sT[0]}, {sT[1]}\ns_add_u32 {sT[0]}, {sT[0]}, {WS_H}")
        self.h_next = 0
        def hload():
            n = self.h_next
            if n >= 48: return
            rt, k = n // 12, n % 12
            if n and k % 4 == 0: e(f"s_add_u32 {sT[0]}, {sT[0]}, {4096 if k else 49152-8192}")
            e(f"buffer_load_dwordx4 {vr(HF+4*(n % 40))}, v14, {WS}, {sT[0]} offen offset:{1024*(k % 4)} sc1")
            self.h_next += 1
        for _ in range(40): hload()
        self.stamp()
        for rt in range(4):
            for k in range(12):
                n = 12 * rt + k
                for nu in range(5):
                    d = vr(ACC + 20 * rt + 4 * nu)
                    e(f"{MF} {d}, {ar(4*(5*k+nu))}, {vr(HF+4*(n % 40))}, {'0' if k == 0 else d}")
                if n >= 1: hload()
        self.stamp()
        e(f"s_mul_i32 {sT[0]}, {sW}, 5120\nv_add_u32 v5, {sT[0]}, v14\nv_add_u32 v7, 40960, v5\ns_mul_i32 {sT[0]}, {sW}, 20480\nv_add_u32 v6, {sT[0]}, v14")
        for rt in range(4):
            for nu in range(5): e(f"ds_write_b128 {'v5' if rt < 2 else 'v7'}, {vr(ACC+20*rt+4*nu)} offset:{L_PART+20480*(rt & 1)+1024*nu}")
        e(f"s_mul_i32 {sT[0]}, {sJS}, 160\nv_lshlrev_b32 v9, 3, v3")
        for nu in range(5): e(f"buffer_load_dwordx2 {vr(96+2*nu, 2)}, v9, {B2}, {sT[0]} offen offset:{32*nu}")
        e(f"v_mul_u32_u24 v8, {HP}, v2\ns_mul_i32 {sT[1]}, {sW}, {16*HP}\ns_add_u32 {sT[1]}, {sT[1]}, {L_HS}\nv_add_u32 v8, {sT[1]}, v8")
        for nu in range(5):
            e(f"v_add_u32 v10, {4*nu}, v3"); self.vdiv("v11", "v10", 5, 19)
            e(f"v_mul_u32_u24 v12, 5, v11\nv_sub_u32 v10, v10, v12\nv_lshlrev_b32 v10, 6, v10\nv_lshl_add_u32 v10, v11, 2, v10\nv_add_u32 v10, v10, v8")
            for r in range(4): e(f"ds_read_b32 v{108+4*nu+r}, v10 offset:{16*r}")
        for nu in range(5):
            for u in range(2):
                e(f"v_lshlrev_b32 v10, 16, v{96+2*nu+u}\nv_and_b32 v11, 0xffff0000, v{96+2*nu+u}\nv_add_f32 v{108+4*nu+2*u}, v{108+4*nu+2*u}, v10\nv_add_f32 v{108+4*nu+2*u+1}, v{108+4*nu+2*u+1}, v11")
        e(f"s_and_b32 {sT[1]}, {sW}, 1\ns_lshl_b32 {sT[1]}, {sT[1]}, 10\ns_lshr_b32 {sT[2]}, {sW}, 1\ns_add_u32 {sT[1]}, {sT[1]}, {sT[2]}\ns_lshl_b32 {sT[2]}, {sRB}, 1\ns_add_u32 {sT[1]}, {sT[1]}, {sT[2]}\ns_mul_i32 {sT[1]}, {sT[1]}, 1280\ns_add_u32 {sT[1]}, {sT[1]}, {sT[0]}")
        e(f"v_mul_u32_u24 v10, 81920, v2\nv_add_u32 v10, v10, v9")
        e.barrier()
        for w in range(4):
            for nu in range(5): e(f"ds_read_b128 {vr(128+20*w+4*nu)}, v6 offset:{L_PART+5120*w+1024*nu}")
        for nu in range(5):
            for w in range(4):
                for u in range(2): e(f"v_pk_add_f32 {vr(108+4*nu+2*u, 2)}, {vr(108+4*nu+2*u, 2)}, {vr(128+20*w+4*nu+2*u, 2)}")
            for u in range(2): e(f"v_cvt_pk_bf16_f32 v{96+2*nu+u}, v{108+4*nu+2*u}, v{108+4*nu+2*u+1}")
            e(f"buffer_store_dwordx2 {vr(96+2*nu, 2)}, v10, {OUT}, {sT[1]} offen offset:{32*nu}")
        self.stamp()

    def build(self):
        e = self.e
        self.prologue()
        self.aux_loads()
        self.p1_consts()
        self.dft64()
        e(f"s_mul_i32 {sTAG}, {sTAG}, 0x9E3779B1\ns_add_u32 {sTAG}, {sTAG}, 0x7F4A7C15")
        self.p1()
        self.f1_table()
        e.wait(vm=0); e.barrier()
        self.stamp()
        self.set_flag(WS_F1, sID)
        if self.stop <= 1: return self.finish()
        self.f1_to_lds()
        self.x3_dma()
        e(f"v_mul_u32_u24 v8, {FS}, v0\nv_add_u32 v9, {WS_F1}, v8")
        self.stamp()
        self.poll("v9", "v10")
        e.barrier()
        self.stamp()
        self.p2()
        self.w1_loads(24)
        self.p3_prep()
        e.wait_vm_tag("vst"); e.barrier()
        self.stamp()
        self.set_flag(WS_F2, sID)
        if self.stop <= 2: return self.finish()
        self.v_dma()
        e(f"v_mul_u32_u24 v8, {FS}, v0\nv_add_u32 v9, {WS_F2}, v8")
        self.stamp()
        self.poll("v9", "v10")
        self.stamp()
        self.v_dma_issue()
        u = self.uid = self.uid + 1
        self.p3()
        e(f"s_or_b32 {sT[0]}, {sID}, {sW}\ns_cmp_lg_u32 {sT[0]}, 0")
        e.branch(f"s_cbranch_scc1 L_ne{u}")
        e.begin_opt()
        e(f"v_mov_b32 v10, {sTAG}\nv_mov_b32 v11, {WS_E}\ns_mov_b64 exec, 1\nbuffer_store_dword v10, v11, {WS}, 0 offen sc1\ns_mov_b64 exec, -1")
        e.end_opt()
        e.label(f"L_ne{u}")
        self.gemm1()
        e.wait(vm=0); e.barrier()
        self.stamp()
        e(f"s_lshl_b32 {sT[0]}, {sRB}, 3\ns_add_u32 {sT[0]}, {sT[0]}, {sJS}")
        self.set_flag(WS_F3, sT[0])
        if self.stop <= 3: return self.finish()
        self.w2_loads()
        e(f"s_lshl_b32 {sT[0]}, {sRB}, 3\ns_lshl_b32 {sT[1]}, {sW}, 1\ns_add_u32 {sT[0]}, {sT[0]}, {sT[1]}\nv_and_b32 v8, 1, v1\nv_add_u32 v8, {sT[0]}, v8\nv_mul_u32_u24 v8, {FS}, v8\nv_add_u32 v9, {WS_F3}, v8")
        self.poll("v9", "v10")
        self.stamp()
        self.p4()
        return self.finish()

HEAD = """; GFNet spectral mixer + channel MLP, one persistent launch (generated by gen.py)
; kernarg: x, w_r, w_i, B_x(unused), w1, b1, w2, b2, out, debug, ws
; @launch grid=(256,1,1) block=(256,1,1) lds=%d
.amdgcn_target "amdgcn-amd-amdhsa--gfx950"
.text
.globl %s
.p2align 8
.type %s,@function
%s:
""" % (LDS_BYTES, KNAME, KNAME, KNAME)
TAIL = """.section .rodata,"a"
.p2align 6
.amdhsa_kernel %s
  .amdhsa_next_free_vgpr 512
  .amdhsa_next_free_sgpr 102
  .amdhsa_accum_offset 256
  .amdhsa_group_segment_fixed_size 0
  .amdhsa_kernarg_size 88
  .amdhsa_user_sgpr_count 2
  .amdhsa_user_sgpr_kernarg_segment_ptr 1
  .amdhsa_system_sgpr_workgroup_id_x 1
  .amdhsa_float_denorm_mode_32 3
.end_amdhsa_kernel
""" % KNAME

def generate(**kw):
    g = Gen(**kw); g.build()
    return HEAD + g.e.text() + TAIL, g

if __name__ == "__main__":
    import argparse
    ap = argparse.ArgumentParser(); ap.add_argument("-o", default="k.s"); ap.add_argument("--stop", type=int, default=99); ap.add_argument("--stamps", action="store_true"); ap.add_argument("--dbg", default=None)
    a = ap.parse_args()
    s, g = generate(stop=a.stop, stamps=a.stamps, dbg=None if a.dbg is None else [int(x) for x in a.dbg.split(",")])
    open(a.o, "w").write(s)
    print(len(s), "bytes", g.e.count, "nops", g.e.nops, "stamps", g.nst)
```
